```python
import torch

def _softmax(x, axis=-1):
    return torch.softmax(x, dim=axis)
def _gelu(x):
    return torch.nn.functional.gelu(x, approximate="tanh")
def _silu(x):
    return torch.nn.functional.silu(x)
def _sigmoid(x):
    return torch.sigmoid(x)
def _layernorm(x, axis=-1, eps=1e-5):
    m = x.mean(dim=axis, keepdim=True)
    v = x.var(dim=axis, keepdim=True, unbiased=False)
    return (x - m) / torch.sqrt(v + eps)
def _scatter_add(tgt, idx, src, axis=0):
    return tgt.clone().index_add_(axis, idx, src)
def _segment_sum(src, seg, n):
    out = torch.zeros((n,) + src.shape[1:], dtype=src.dtype)
    return out.index_add_(0, seg, src)
def _pad(x, pw):
    flat = tuple(v for pair in reversed(pw) for v in pair)
    return torch.nn.functional.pad(x, flat)

kernel_name = 'gated_mix__sliding_block_cached__dense_activation_gelu__decode'

def setup_inputs():

    _w = (lambda a: (lambda t: t.to(torch.bfloat16) if t.is_floating_point() else t)(torch.as_tensor(a)))
    def _A_setup():
        B, Sq, D = 1, 1, 576
        Hq, Hkv, Sk, Dh = 32, 16, 32768, 128
        assert Hq % Hkv == 0, (Hq, Hkv)
        return {
            "x": _w((lambda *s: torch.randn(*s, dtype=torch.bfloat16) * 0.05)(B, Sq, D)),
            "k_cache": _w((lambda *s: torch.randn(*s, dtype=torch.bfloat16) * 3.2)(B, Hkv, Sk, Dh)),
            "v_cache": _w((lambda *s: torch.randn(*s, dtype=torch.bfloat16) * 0.2)(B, Hkv, Sk, Dh)),
            "wq": _w((lambda *s: torch.randn(*s, dtype=torch.bfloat16) * 3.2)(D, Hq * Dh) * (D ** -0.5)),
            "wo": _w((lambda *s: torch.randn(*s, dtype=torch.bfloat16) * 0.2)(Hq * Dh, D) * ((Hq * Dh) ** -0.5)),
        }
    _A_in = _A_setup()

    def _B_setup():
        B, S, D, F = 1, 1, 576, 4608
        return {
            "x": _w((lambda *s: torch.randn(*s, dtype=torch.bfloat16) * 0.05)(B, S, D)),
            "w1": _w((lambda *s: torch.randn(*s, dtype=torch.bfloat16) * 0.2)(D, F) * (D ** -0.5)),
            "b1": _w((lambda *s: torch.randn(*s, dtype=torch.bfloat16) * 0.2)(F) * 0.01),
            "w2": _w((lambda *s: torch.randn(*s, dtype=torch.bfloat16) * 0.2)(F, D) * (F ** -0.5)),
            "b2": _w((lambda *s: torch.randn(*s, dtype=torch.bfloat16) * 0.05)(D) * 0.01),
        }
    _B_in = _B_setup()

    return {
        "A_x": _A_in["x"],
        "A_k_cache": _A_in["k_cache"],
        "A_v_cache": _A_in["v_cache"],
        "A_wq": _A_in["wq"],
        "A_wo": _A_in["wo"],
        "B_x": _B_in["x"],
        "B_w1": _B_in["w1"],
        "B_b1": _B_in["b1"],
        "B_w2": _B_in["w2"],
        "B_b2": _B_in["b2"],
        "gate_w": _w((lambda *s: torch.randn(*s, dtype=torch.bfloat16) * 0.05)(576) * 16.0),
    }

def reference(A_x, A_k_cache, A_v_cache, A_wq, A_wo, B_x, B_w1, B_b1, B_w2, B_b2, gate_w):
    def _A_ref(x, k_cache, v_cache, wq, wo):
        B, Sq, D = x.shape
        Hq, Dh = 32, 128
        Hkv, Sk = k_cache.shape[1], k_cache.shape[2]
        W = min(4096, max(256, Sk // 4))
        rep = Hq // Hkv
        q = (lambda x, *d: x.permute(*d))((x @ wq).reshape(B, Sq, Hq, Dh), 0, 2, 1, 3)
        k = (lambda x, n, axis: torch.repeat_interleave(x, n, dim=axis))(k_cache[:, :, Sk - W:, :], rep, axis=1)
        v = (lambda x, n, axis: torch.repeat_interleave(x, n, dim=axis))(v_cache[:, :, Sk - W:, :], rep, axis=1)
        scores = torch.einsum("bhqd,bhkd->bhqk", q, k) * (Dh ** -0.5)
        p = _softmax(scores, axis=-1)
        o = torch.einsum("bhqk,bhkd->bhqd", p, v)
        return (lambda x, *d: x.permute(*d))(o, 0, 2, 1, 3).reshape(B, Sq, Hq * Dh) @ wo

    def _B_ref(x, w1, b1, w2, b2):
        h = torch.einsum("bsd,df->bsf", x, w1) + b1
        h = _gelu(h)
        return torch.einsum("bsf,fd->bsd", h, w2) + b2

    x = A_x
    g = _sigmoid((x * gate_w).sum(-1, keepdims=True))
    a = _A_ref(x, A_k_cache, A_v_cache, A_wq, A_wo)
    b = _B_ref(x, B_w1, B_b1, B_w2, B_b2)
    return g * a + (1 - g) * b
```

```python
NAME = "gated_mix__sliding_block_cached__dense_activation_gelu__decode"
HDR_COMMENT = open("cdna_kernels/%s.s.ref" % NAME).read().split("; Override launch geometry")[0]

def header(grid, block, lds):
    return HDR_COMMENT + f"""; @launch grid=({grid},1,1) block=({block},1,1) lds={lds}
.amdgcn_target "amdgcn-amd-amdhsa--gfx950"
.text
.globl {NAME}_kernel
.p2align 8
.type {NAME}_kernel,@function
{NAME}_kernel:
"""

def footer(vgpr, sgpr=102, accum=None):
    if accum is None:
        accum = (vgpr + 3) // 4 * 4
    return f"""
.section .rodata,"a"
.p2align 6
.amdhsa_kernel {NAME}_kernel
  .amdhsa_next_free_vgpr {vgpr}
  .amdhsa_next_free_sgpr {sgpr}
  .amdhsa_accum_offset {accum}
  .amdhsa_group_segment_fixed_size 0
  .amdhsa_kernarg_size 112
  .amdhsa_user_sgpr_count 2
  .amdhsa_user_sgpr_kernarg_segment_ptr 1
  .amdhsa_system_sgpr_workgroup_id_x 1
.end_amdhsa_kernel
"""
```

```python
import sys, math, struct
from gen_common import *

def f32(x):
    return "0x%08x" % struct.unpack("<I", struct.pack("<f", x))[0]

QP = 0x10000; HP = 0x20000; OP = 0x40000; FP = 0x100000; STAMP = 0x10000000
L_K = 0; L_OP = 65536; L_Q = L_OP + 8192; L_MX = L_Q + 512; L_LS = L_MX + 64; L_H = L_LS + 64; L_O = L_H + 64; L_G = L_O + 64
LDS_BYTES = L_G + 64
NW = 11
SPIN_MAX = 200000

def gen(out, stamps=False):
    L = []
    def e(s): L.append("    " + s)
    def lab(s): L.append(s + ":")
    def stamp(i):
        if stamps: e(f"s_memrealtime s[{80+2*i}:{81+2*i}]")
    def srd(d, b, n):
        e(f"s_mov_b64 s[{d}:{d+1}], s[{b}:{b+1}]"); e(f"s_mov_b32 s{d+2}, {n}"); e(f"s_mov_b32 s{d+3}, 0x20000")
    vLane, vN, vG, vSub, vJ, vTag, vL16, vT0, vT1, vT2, vT3 = 2, 3, 4, 5, 6, 7, 8, 9, 10, 11, 12
    vA0, vA1 = 13, 14
    SEL = 16
    ACC = 24
    TMP = 28
    sW, sH, sS, sTag = 3, 35, 36, 34
    sA, sB, sC, sD, sWS = 40, 44, 48, 52, 56
    sTS = 60
    sCK = 64
    def tagsetup():
        e(f"s_add_u32 s{sTag}, s{sTag}, 0x01010101")
        e(f"v_mov_b32 v{vTag}, s{sTag}")
    def tag4(dst, src):
        for k in range(4):
            e(f"v_perm_b32 v{dst+k}, v{src+k}, v{vTag}, s{sTS+k}")
    def check4(src, dst):
        e(f"v_perm_b32 v{dst}, v{src+1}, v{src}, s{sCK}")
        e(f"v_perm_b32 v{dst+1}, v{src+3}, v{src+2}, s{sCK}")
        e(f"v_lshl_or_b32 v{dst}, v{dst+1}, 16, v{dst}")
    def selsetup():
        e(f"v_and_b32 v{vT0}, 1, v{vLane}")
        e(f"v_cmp_eq_u32 vcc, 1, v{vT0}")
        e(f"v_mov_b32 v{vT1}, 0x0c0c0100"); e(f"v_mov_b32 v{vT2}, 0x01000c0c")
        e(f"v_cndmask_b32 v{vT1}, v{vT1}, v{vT2}, vcc")
        e(f"v_mov_b32 v{vT2}, 0x0c0c0302"); e(f"v_mov_b32 v{vT3}, 0x03020c0c")
        e(f"v_cndmask_b32 v{vT2}, v{vT2}, v{vT3}, vcc")
        e(f"v_mov_b32 v{vT3}, 0x0c0c0c0c")
        e(f"v_lshrrev_b32 v{vT0}, 1, v{vJ}")
        for w in range(4):
            e(f"v_cmp_eq_u32 vcc, {w}, v{vT0}")
            e("s_nop 1")
            e(f"v_cndmask_b32 v{SEL+w}, v{vT3}, v{vT1}, vcc")
            e(f"v_cndmask_b32 v{SEL+4+w}, v{vT3}, v{vT2}, vcc")
        for k in range(4):
            e(f"s_mov_b32 s{sTS+k}, 0x0706050{k}")
        e(f"s_mov_b32 s{sCK}, 0x0c0c0400")
    def abuild(dst, src, par):
        for w in range(4):
            e(f"v_perm_b32 v{dst+w}, v{src}, v{src}, v{SEL+4*par+w}")
    def mfma(d, a, b, c=None):
        cs = f"v[{d}:{d+3}]" if c is None else c
        e(f"v_mfma_f32_16x16x32_bf16 v[{d}:{d+3}], v[{a}:{a+3}], v[{b}:{b+3}], {cs}")
    DPP = "row_mask:0xf bank_mask:0xf"
    def halfadd_tag_store(soff):
        for r in range(4):
            e(f"v_permlane32_swap_b32 v{ACC+r}, v{TMP+r}")
        for r in range(4):
            e(f"v_add_f32_dpp v{ACC+r}, v{TMP+r}, v{ACC+r} row_ror:8 {DPP}")
        tag4(ACC, ACC)
        e("s_mov_b64 exec, 0x00ff00ff")
        e(f"buffer_store_dwordx4 v[{ACC}:{ACC+3}], v{vA0}, s[{sWS}:{sWS+3}], s{soff} offen sc1")
        e("s_mov_b64 exec, -1")
    def spin_tail(loop, done, cnt):
        e(f"s_cbranch_vccz {done}")
        e(f"s_add_u32 s{cnt}, s{cnt}, 1")
        e(f"s_cmp_lt_u32 s{cnt}, {SPIN_MAX}")
        e(f"s_cbranch_scc1 {loop}")
        lab(done)
    def xrow_op(op, x, t):
        e(f"v_mov_b32 v{t}, v{x}")
        e("s_nop 1")
        e(f"v_permlane16_swap_b32 v{t}, v{x}")
        e(f"{op} v{x}, v{x}, v{t}")
        e(f"v_mov_b32 v{t}, v{x}")
        e("s_nop 1")
        e(f"v_permlane32_swap_b32 v{t}, v{x}")
        e(f"{op} v{x}, v{x}, v{t}")

    lab("L_start")
    stamp(0)
    e("s_cmp_ge_u32 s2, 256")
    e("s_cbranch_scc1 L_end")
    e("s_load_dwordx16 s[8:23], s[0:1], 0")
    e("s_load_dwordx8 s[24:31], s[0:1], 64")
    e("s_load_dwordx2 s[32:33], s[0:1], 104")
    e("v_lshrrev_b32 v1, 6, v0")
    e(f"v_and_b32 v{vLane}, 63, v0")
    e(f"v_readfirstlane_b32 s{sW}, v1")
    e(f"v_and_b32 v{vN}, 15, v{vLane}")
    e(f"v_lshrrev_b32 v{vG}, 4, v{vLane}")
    e(f"v_lshrrev_b32 v{vT0}, 3, v{vN}")
    e(f"v_lshl_add_u32 v{vSub}, v{vT0}, 2, v{vG}")
    e(f"v_and_b32 v{vJ}, 7, v{vLane}")
    e(f"v_lshlrev_b32 v{vL16}, 4, v{vLane}")
    e(f"s_and_b32 s{sH}, s2, 7")
    e(f"s_lshl_b32 s{sH}, s{sH}, 1")
    e("s_bfe_u32 s65, s2, 0x10003")
    e(f"s_add_u32 s{sH}, s{sH}, s65")
    e(f"s_lshr_b32 s{sS}, s2, 4")
    e(f"s_cmp_ge_u32 s{sW}, 2")
    e("s_cbranch_scc1 L_kv")

    X = 32
    AB = 44
    B1 = 52
    WD = 56
    e("s_setprio 3")
    e(f"s_cmp_eq_u32 s{sW}, 0")
    e("s_cbranch_scc0 L_p1_w1")
    e(f"s_mov_b32 s66, {18*8192}"); e("s_mov_b32 s67, 8192"); e("s_mov_b32 s71, 36")
    e(f"s_lshr_b32 s72, s{sS}, 2")
    e(f"s_and_b32 s73, s{sS}, 3")
    e(f"s_mul_i32 s68, s72, {144*8192}")
    e(f"s_lshl_b32 s74, s{sH}, 9")
    e("s_add_u32 s68, s68, s74")
    e("s_lshl_b32 s74, s73, 7")
    e("s_add_u32 s68, s68, s74")
    e("s_mul_i32 s69, s72, 288")
    e(f"s_lshl_b32 s70, s{sH}, 12")
    e(f"s_lshl_b32 s74, s{sS}, 8")
    e("s_add_u32 s70, s70, s74")
    e(f"s_add_u32 s70, s70, {QP}")
    e("s_waitcnt lgkmcnt(0)")
    srd(sA, 14, 4718592)
    e("s_branch L_p1_common")
    lab("L_p1_w1")
    e(f"s_mov_b32 s66, {24*9216}"); e("s_mov_b32 s67, 9216"); e("s_mov_b32 s71, 48")
    e("s_mov_b32 s72, 0")
    e("s_cmp_ge_u32 s2, 72"); e("s_addc_u32 s72, s72, 0")
    e("s_cmp_ge_u32 s2, 144"); e("s_addc_u32 s72, s72, 0")
    e("s_mul_i32 s73, s72, 72")
    e("s_sub_u32 s73, s2, s73")
    e(f"s_mul_i32 s68, s72, {192*9216}")
    e("s_lshl_b32 s74, s73, 7")
    e("s_add_u32 s68, s68, s74")
    e("s_mul_i32 s69, s72, 384")
    e("s_mul_i32 s70, s72, 18432")
    e("s_lshl_b32 s74, s73, 8")
    e("s_add_u32 s70, s70, s74")
    e(f"s_add_u32 s70, s70, {HP}")
    e("s_waitcnt lgkmcnt(0)")
    srd(sA, 20, 5308416)
    lab("L_p1_common")
    e(f"s_load_dword s{sTag}, s[32:33], 0")
    srd(sB, 8, 1152)
    srd(sWS, 32, 536870912)
    e(f"v_mul_lo_u32 v{vA0}, v{vSub}, s66")
    e(f"v_lshl_add_u32 v{vA0}, v{vJ}, 4, v{vA0}")
    e(f"v_mul_lo_u32 v{vA1}, v{vSub}, s71")
    for r in range(4): e(f"v_mov_b32 v{ACC+r}, 0")
    e(f"s_cmp_eq_u32 s{sW}, 0")
    e("s_cbranch_scc1 L_p1_ld")
    srd(sC, 22, 9216)
    srd(sD, 26, 1152)
    e("s_mul_i32 s75, s2, 18")
    e("s_lshr_b32 s75, s75, 2")
    e("s_lshl_b32 s76, s75, 3")
    e(f"v_lshlrev_b32 v{vT0}, 3, v{vLane}")
    e(f"buffer_load_dwordx2 v[{B1}:{B1+1}], v{vT0}, s[{sC}:{sC+3}], s76 offen")
    e(f"v_lshlrev_b32 v{vT1}, 1, v{vG}")
    e("s_lshl_b32 s76, s2, 3")
    e(f"buffer_load_ushort v{B1+2}, v{vT1}, s[{sD}:{sD+3}], s76 offen")
    e("s_cmp_ge_u32 s2, 216")
    e("s_cbranch_scc1 L_p1_nogemv")
    lab("L_p1_ld")
    for k in range(3):
        e(f"buffer_load_dwordx4 v[{X+4*k}:{X+4*k+3}], v{vA1}, s[{sB}:{sB+3}], s69 offen offset:{16*k}")
    e(f"s_cmp_eq_u32 s{sW}, 0")
    e("s_cbranch_scc1 L_p1_ld18")
    e(f"s_add_u32 s74, s68, {18*9216}")
    for u in range(18, 24):
        e(f"buffer_load_dwordx4 v[{WD+4*u}:{WD+4*u+3}], v{vA0}, s[{sA}:{sA+3}], s74 offen nt")
        if u < 23: e("s_add_u32 s74, s74, s67")
    lab("L_p1_ld18")
    for u in range(18):
        e(f"buffer_load_dwordx4 v[{WD+4*u}:{WD+4*u+3}], v{vA0}, s[{sA}:{sA+3}], s68 offen nt")
        if u < 17: e("s_add_u32 s68, s68, s67")
    stamp(1)
    e("s_barrier")
    selsetup()
    e(f"v_lshl_add_u32 v{vA0}, v{vJ}, 1, v{vG}")
    e(f"v_lshlrev_b32 v{vA0}, 4, v{vA0}")
    e("s_waitcnt lgkmcnt(0)")
    tagsetup()
    e(f"s_cmp_eq_u32 s{sW}, 0")
    e("s_cbranch_scc1 L_p1_c18")
    e("s_waitcnt vmcnt(24)")
    for k, u in enumerate(range(18, 24)):
        abuild(AB + 4 * (u & 1), X + (u >> 1), u & 1)
        e(f"s_waitcnt vmcnt({23-k})")
        e("s_nop 0")
        mfma(ACC, AB + 4 * (u & 1), WD + 4 * u)
    lab("L_p1_c18")
    e("s_waitcnt vmcnt(18)")
    for u in range(18):
        abuild(AB + 4 * (u & 1), X + (u >> 1), u & 1)
        e(f"s_waitcnt vmcnt({17-u})")
        e("s_nop 0")
        mfma(ACC, AB + 4 * (u & 1), WD + 4 * u)
    stamp(2)
    e("s_nop 7")
    halfadd_tag_store(70)
    e(f"s_cmp_eq_u32 s{sW}, 0")
    e("s_cbranch_scc1 L_w0")
    e("s_branch L_w1")
    lab("L_p1_nogemv")
    e("s_barrier")
    selsetup()
    e("s_waitcnt lgkmcnt(0)")
    tagsetup()

    lab("L_w1")
    G = 56
    e("s_lshl_b32 s76, s75, 4")
    e(f"s_add_u32 s76, s76, {HP}")
    e("s_add_u32 s77, s76, 18432")
    e("s_add_u32 s78, s77, 18432")
    e("s_mov_b32 s79, 0")
    e("s_mov_b64 exec, 0x1f")
    lab("L_hpoll")
    for k in range(3):
        e(f"buffer_load_dwordx4 v[{G+4*k}:{G+4*k+3}], v{vL16}, s[{sWS}:{sWS+3}], s{76+k} offen sc1")
    e("s_waitcnt vmcnt(0)")
    for k in range(3):
        check4(G + 4 * k, G + 12 + 2 * k)
        e(f"v_xor_b32 v{G+12+2*k}, v{G+12+2*k}, v{vTag}")
    e(f"v_or3_b32 v{G+12}, v{G+12}, v{G+14}, v{G+16}")
    e(f"v_cmp_ne_u32 vcc, 0, v{G+12}")
    spin_tail("L_hpoll", "L_hdone", 79)
    stamp(3)
    e(f"v_lshlrev_b32 v{G+12}, 16, v{B1}")
    e(f"v_and_b32 v{G+13}, 0xffff0000, v{B1}")
    e(f"v_lshlrev_b32 v{G+14}, 16, v{B1+1}")
    e(f"v_and_b32 v{G+15}, 0xffff0000, v{B1+1}")
    for r in range(4):
        e(f"v_add_f32 v{G+r}, v{G+r}, v{G+4+r}")
        e(f"v_add_f32 v{G+8+r}, v{G+8+r}, v{G+12+r}")
    for r in range(4):
        e(f"v_add_f32 v{G+r}, v{G+r}, v{G+8+r}")
    c1 = -2.0 * math.sqrt(2.0 / math.pi) * math.log2(math.e)
    e(f"v_mov_b32 v{G+12}, {f32(c1)}")
    e(f"v_mov_b32 v{G+13}, {f32(c1 * 0.044715)}")
    for r in range(4): e(f"v_mul_f32 v{G+4+r}, v{G+r}, v{G+r}")
    for r in range(4): e(f"v_fma_f32 v{G+4+r}, v{G+4+r}, v{G+13}, v{G+12}")
    for r in range(4): e(f"v_mul_f32 v{G+4+r}, v{G+4+r}, v{G+r}")
    for r in range(4): e(f"v_exp_f32 v{G+4+r}, v{G+4+r}")
    e("s_nop 0")
    for r in range(4): e(f"v_add_f32 v{G+4+r}, 1.0, v{G+4+r}")
    for r in range(4): e(f"v_rcp_f32 v{G+4+r}, v{G+4+r}")
    e("s_nop 0")
    for r in range(4): e(f"v_mul_f32 v{G+r}, v{G+r}, v{G+4+r}")
    e(f"v_cvt_pk_bf16_f32 v{G+4}, v{G}, v{G+1}")
    e(f"v_cvt_pk_bf16_f32 v{G+5}, v{G+2}, v{G+3}")
    e(f"v_lshlrev_b32 v{vT0}, 3, v{vLane}")
    e(f"ds_write_b64 v{vT0}, v[{G+4}:{G+5}] offset:{L_H}") if L_H < 65536 else None
    if L_H >= 65536:
        e(f"v_add_u32 v{vT0}, {L_H}, v{vT0}")
        e(f"ds_write_b64 v{vT0}, v[{G+4}:{G+5}]")
    e("s_mov_b64 exec, -1")
    e("s_waitcnt lgkmcnt(0)")
    e("s_barrier")
    e("s_cmp_ge_u32 s2, 144")
    e("s_cbranch_scc1 L_fin")
    e(f"v_mov_b32 v{vT0}, {L_G}")
    e(f"ds_read_b32 v{vT1}, v{vT0}")
    srd(sC, 30, 1152)
    e("s_lshl_b32 s76, s2, 12")
    e(f"s_add_u32 s76, s76, {FP}")
    e("s_mov_b32 s79, 0")
    e("s_waitcnt lgkmcnt(0)")
    e(f"v_sub_f32 v{vT1}, 1.0, v{vT1}")
    e(f"v_lshlrev_b32 v{B1+2}, 16, v{B1+2}")
    e(f"v_mul_f32 v{B1+2}, v{B1+2}, v{vT1}")
    e(f"v_lshlrev_b32 v{vA0}, 1, v{vG}")
    e("s_lshl_b32 s77, s2, 3")
    for k in range(4): e(f"s_mov_b64 s[{66+2*k}:{67+2*k}], -1")
    e("s_barrier")
    e("s_barrier")
    e("s_barrier")
    stamp(4)
    lab("L_fpoll")
    for k in range(4):
        e(f"s_mov_b64 exec, s[{66+2*k}:{67+2*k}]")
        e(f"s_cbranch_execz L_fp_s{k}")
        e(f"buffer_load_dwordx4 v[{G+4*k}:{G+4*k+3}], v{vL16}, s[{sWS}:{sWS+3}], s76 offen offset:{1024*k} sc1")
        lab(f"L_fp_s{k}")
    e("s_mov_b64 exec, -1")
    e("s_waitcnt vmcnt(0)")
    for k in range(4):
        check4(G + 4 * k, G + 16 + 2 * k)
    for k in range(4):
        e(f"v_cmp_ne_u32 s[{66+2*k}:{67+2*k}], v{G+16+2*k}, v{vTag}")
    e("s_or_b64 vcc, s[66:67], s[68:69]")
    e("s_or_b64 vcc, vcc, s[70:71]")
    e("s_or_b64 vcc, vcc, s[72:73]")
    e("s_cbranch_scc0 L_fdone")
    e("s_add_u32 s79, s79, 1")
    e(f"s_cmp_lt_u32 s79, {SPIN_MAX}")
    e("s_cbranch_scc1 L_fpoll")
    lab("L_fdone")
    stamp(5)
    for r in range(4):
        e(f"v_add_f32 v{G+r}, v{G+r}, v{G+4+r}")
        e(f"v_add_f32 v{G+8+r}, v{G+8+r}, v{G+12+r}")
    for r in range(4):
        e(f"v_add_f32 v{G+r}, v{G+r}, v{G+8+r}")
    e("s_nop 1")
    e(f"v_permlane32_swap_b32 v{G}, v{G+2}")
    e(f"v_permlane32_swap_b32 v{G+1}, v{G+3}")
    e(f"v_add_f32 v{G}, v{G}, v{G+2}")
    e(f"v_add_f32 v{G+1}, v{G+1}, v{G+3}")
    e("s_nop 1")
    e(f"v_permlane16_swap_b32 v{G}, v{G+1}")
    e(f"v_add_f32 v{G}, v{G}, v{G+1}")
    for sh in (8, 4, 2, 1):
        e("s_nop 1")
        e(f"v_add_f32_dpp v{G}, v{G}, v{G} row_ror:{sh} {DPP}")
    e(f"v_add_f32 v{G}, v{G}, v{B1+2}")
    e(f"v_cvt_pk_bf16_f32 v{G}, v{G}, v{G}")
    e("s_mov_b32 exec_lo, 0x00010001")
    e("s_mov_b32 exec_hi, 0x00010001")
    e(f"buffer_store_short v{G}, v{vA0}, s[{sC}:{sC+3}], s77 offen")
    e("s_cmp_eq_u32 s2, 0")
    e("s_cbranch_scc0 L_fin1")
    e("s_mov_b64 exec, 1")
    e(f"v_mov_b32 v{vT0}, 0")
    e(f"buffer_store_dword v{vTag}, v{vT0}, s[{sWS}:{sWS+3}], 0 offen")
    lab("L_fin1")
    e("s_mov_b64 exec, -1")
    stamp(6)
    e("s_branch L_fin")

    lab("L_w0")
    e(f"s_lshl_b32 s76, s{sH}, 12")
    e(f"s_add_u32 s76, s76, {QP}")
    e("s_mov_b32 s79, 0")
    lab("L_qpoll")
    for k in range(4):
        e(f"buffer_load_dwordx4 v[{G+4*k}:{G+4*k+3}], v{vL16}, s[{sWS}:{sWS+3}], s76 offen offset:{1024*k} sc1")
    e("s_waitcnt vmcnt(0)")
    for k in range(4):
        check4(G + 4 * k, G + 16 + 2 * k)
        e(f"v_xor_b32 v{G+16+2*k}, v{G+16+2*k}, v{vTag}")
    e(f"v_or3_b32 v{G+16}, v{G+16}, v{G+18}, v{G+20}")
    e(f"v_or_b32 v{G+16}, v{G+16}, v{G+22}")
    e(f"v_cmp_ne_u32 vcc, 0, v{G+16}")
    spin_tail("L_qpoll", "L_qdone", 79)
    stamp(3)
    for r in range(4):
        e(f"v_add_f32 v{G+r}, v{G+r}, v{G+4+r}")
        e(f"v_add_f32 v{G+8+r}, v{G+8+r}, v{G+12+r}")
    for r in range(4):
        e(f"v_add_f32 v{G+r}, v{G+r}, v{G+8+r}")
    e(f"v_cvt_pk_bf16_f32 v{G+4}, v{G}, v{G+1}")
    e(f"v_cvt_pk_bf16_f32 v{G+5}, v{G+2}, v{G+3}")
    e(f"v_lshlrev_b32 v{vT0}, 3, v{vLane}")
    e(f"v_add_u32 v{vT0}, {L_Q}, v{vT0}")
    e(f"ds_write_b64 v{vT0}, v[{G+4}:{G+5}]")
    e("s_waitcnt lgkmcnt(0)")
    e("s_barrier")
    CS = (128 ** -0.5) * math.log2(math.e)
    vMXA, vG_, vM, vOA, vSA, vOPA = 32, 33, 34, 35, 36, 37
    e(f"v_lshrrev_b32 v{vT0}, 3, v{vN}")
    e(f"v_lshlrev_b32 v{vMXA}, 5, v{vT0}")
    e(f"v_add_u32 v{vMXA}, {L_MX}, v{vMXA}")
    e(f"v_mov_b32 v{vT1}, {L_G}")
    e(f"ds_read_b32 v{vG_}, v{vT1}")
    e(f"v_lshrrev_b32 v{vT1}, 1, v{vG}")
    e(f"v_lshlrev_b32 v{vT1}, 5, v{vT1}")
    e(f"v_lshl_add_u32 v{vT1}, v{vN}, 1, v{vT1}")
    e(f"v_and_b32 v{vT2}, 1, v{vG}")
    e(f"v_add_u32 v{vT1}, v{vT1}, v{vT2}")
    e(f"v_lshlrev_b32 v{vOA}, 8, v{vT1}")
    e(f"v_add_u32 v{vT0}, 64, v{vT0}")
    e(f"v_lshlrev_b32 v{vSA}, 8, v{vT0}")
    e(f"v_add_u32 v{vOPA}, {L_OP}, v{vL16}")
    e(f"s_lshl_b32 s76, s{sH}, 15")
    e(f"s_add_u32 s76, s76, {OP}")
    e(f"s_lshl_b32 s77, s{sS}, 4")
    e("s_add_u32 s77, s77, s76")
    e(f"s_lshl_b32 s78, s{sS}, 10")
    e("s_add_u32 s78, s78, s76")
    e(f"s_lshr_b32 s74, s{sS}, 3")
    e("s_add_u32 s74, s74, 64")
    e("s_lshl_b32 s74, s74, 8")
    e("s_add_u32 s74, s74, s76")
    e(f"v_lshlrev_b32 v{vA1}, 4, v{vN}")
    e("s_mov_b32 s79, 0")
    e("s_barrier")
    e(f"ds_read_b128 v[{G}:{G+3}], v{vMXA}")
    e(f"ds_read_b128 v[{G+4}:{G+7}], v{vMXA} offset:16")
    e("s_waitcnt lgkmcnt(0)")
    e(f"v_max3_f32 v{G}, v{G}, v{G+1}, v{G+2}")
    e(f"v_max3_f32 v{G+3}, v{G+3}, v{G+4}, v{G+5}")
    e(f"v_max3_f32 v{G}, v{G}, v{G+6}, v{G+7}")
    e(f"v_max_f32 v{G}, v{G}, v{G+3}")
    e(f"v_mul_f32 v{vM}, {f32(CS)}, v{G}")
    ST = 40
    e(f"v_perm_b32 v{ST}, v{vM}, v{vTag}, s{sTS}")
    e(f"v_perm_b32 v{ST+2}, v{vM}, v{vTag}, s{sTS+2}")
    e(f"v_perm_b32 v{ST+3}, v{vM}, v{vTag}, s{sTS+3}")
    e("s_barrier")
    stamp(4)
    for k in range(8):
        e(f"ds_read_b128 v[{G+4*k}:{G+4*k+3}], v{vOPA} offset:{1024*k}")
    e(f"ds_read_b128 v[{G+32}:{G+35}], v{vMXA} offset:64")
    e(f"ds_read_b128 v[{G+36}:{G+39}], v{vMXA} offset:80")
    e("s_waitcnt lgkmcnt(0)")
    for st in (4, 8, 16):
        for k in range(0, 32, 2 * st):
            for r in range(4):
                e(f"v_add_f32 v{G+k+r}, v{G+k+r}, v{G+k+st+r}")
    tag4(G, G)
    e(f"buffer_store_dwordx4 v[{G}:{G+3}], v{vOA}, s[{sWS}:{sWS+3}], s77 offen sc1")
    for r in range(4): e(f"v_add_f32 v{G+32+r}, v{G+32+r}, v{G+36+r}")
    e(f"v_add_f32 v{G+32}, v{G+32}, v{G+33}")
    e(f"v_add_f32 v{G+34}, v{G+34}, v{G+35}")
    e(f"v_add_f32 v{G+32}, v{G+32}, v{G+34}")
    e(f"v_perm_b32 v{ST+1}, v{G+32}, v{vTag}, s{sTS+1}")
    e("s_mov_b64 exec, 0x101")
    e(f"buffer_store_dwordx4 v[{ST}:{ST+3}], v{vSA}, s[{sWS}:{sWS+3}], s77 offen sc1")
    e("s_mov_b64 exec, -1")
    stamp(5)
    O2 = G + 8
    lab("L_opoll")
    e(f"buffer_load_dwordx4 v[{O2}:{O2+3}], v{vL16}, s[{sWS}:{sWS+3}], s78 offen sc1")
    e(f"buffer_load_dwordx4 v[{O2+4}:{O2+7}], v{vA1}, s[{sWS}:{sWS+3}], s74 offen sc1")
    e("s_waitcnt vmcnt(0)")
    check4(O2, O2 + 8)
    check4(O2 + 4, O2 + 10)
    e(f"v_xor_b32 v{O2+8}, v{O2+8}, v{vTag}")
    e(f"v_xor_b32 v{O2+10}, v{O2+10}, v{vTag}")
    e(f"v_or_b32 v{O2+8}, v{O2+8}, v{O2+10}")
    e(f"v_cmp_ne_u32 vcc, 0, v{O2+8}")
    spin_tail("L_opoll", "L_odone", 79)
    stamp(6)
    m, l, M = O2 + 4, O2 + 5, O2 + 8
    e(f"v_max_f32_dpp v{M}, v{m}, v{m} row_ror:8 {DPP}")
    for sh in (4, 2, 1):
        e("s_nop 1")
        e(f"v_max_f32_dpp v{M}, v{M}, v{M} row_ror:{sh} {DPP}")
    e(f"v_sub_f32 v{M}, v{m}, v{M}")
    e(f"v_exp_f32 v{M}, v{M}")
    e("s_nop 0")
    e(f"v_mul_f32 v{l}, v{l}, v{M}")
    for r in range(4): e(f"v_mul_f32 v{O2+r}, v{O2+r}, v{M}")
    for sh in (8, 4, 2, 1):
        e(f"v_add_f32_dpp v{l}, v{l}, v{l} row_ror:{sh} {DPP}")
        for r in range(4): e(f"v_add_f32_dpp v{O2+r}, v{O2+r}, v{O2+r} row_ror:{sh} {DPP}")
    e(f"v_rcp_f32 v{l}, v{l}")
    e(f"v_lshlrev_b32 v{vT0}, 3, v{vG}")
    e(f"v_mul_f32 v{l}, v{l}, v{vG_}")
    for r in range(4): e(f"v_mul_f32 v{O2+r}, v{O2+r}, v{l}")
    e(f"v_cvt_pk_bf16_f32 v{O2}, v{O2}, v{O2+1}")
    e(f"v_cvt_pk_bf16_f32 v{O2+1}, v{O2+2}, v{O2+3}")
    e(f"v_add_u32 v{vT0}, {L_O}, v{vT0}")
    e("s_mov_b32 exec_lo, 0x00010001")
    e("s_mov_b32 exec_hi, 0x00010001")
    e(f"ds_write_b64 v{vT0}, v[{O2}:{O2+1}]")
    e("s_mov_b64 exec, -1")
    e("s_waitcnt lgkmcnt(0)")
    e("s_barrier")
    stamp(7)
    e("s_branch L_fin")

    lab("L_kv")
    VD = 32
    LD = 64
    KF = 84
    QF = 116
    S = 132
    KA = 140
    vWO, vW2, vMX2, vHA, vGg = 144, 145, 146, 147, 148
    HV = 149
    sKW = 37
    e(f"s_sub_u32 s{sKW}, s{sW}, 2")
    e(f"v_mul_u32_u24 v{vWO}, {2*1152}, v{vSub}")
    e(f"v_lshl_add_u32 v{vWO}, v{vJ}, 4, v{vWO}")
    e(f"v_mul_u32_u24 v{vW2}, {3*1152}, v{vSub}")
    e(f"v_lshl_add_u32 v{vW2}, v{vJ}, 4, v{vW2}")
    e(f"v_mov_b32 v{vT0}, 0x7fff0000")
    e(f"v_cmp_gt_u32 vcc, 6, v{vSub}")
    e(f"s_lshl_b32 s66, s{sH}, 4")
    e(f"s_add_u32 s66, s66, s{sS}")
    e(f"v_cndmask_b32 v{vW2}, v{vT0}, v{vW2}, vcc")
    e(f"s_mul_i32 s66, s66, {16*1152}")
    e(f"s_lshl_b32 s67, s{sKW}, 7")
    e("s_add_u32 s66, s66, s67")
    e(f"s_mul_i32 s68, s2, {18*1152}")
    e("s_add_u32 s68, s68, s67")
    e(f"v_lshlrev_b32 v{vT0}, 2, v{vG}")
    e(f"v_xor_b32 v{vT0}, v{vT0}, v{vN}")
    e(f"v_lshlrev_b32 v{vT0}, 4, v{vT0}")
    e(f"v_lshl_add_u32 v{KA}, v{vG}, 8, v{vT0}")
    for u in range(1, 4): e(f"v_xor_b32 v{KA+u}, {16*u}, v{KA}")
    e(f"s_lshl_b32 s69, s{sH}, 23")
    e(f"s_lshl_b32 s70, s{sS}, 16")
    e("s_add_u32 s69, s69, s70")
    e(f"s_lshl_b32 s70, s{sKW}, 13")
    e("s_add_u32 s69, s69, s70")
    e(f"s_add_u32 s69, s69, {28672*256}")
    e("s_add_u32 s71, s69, 4096")
    e("s_waitcnt lgkmcnt(0)")
    e(f"s_load_dword s{sTag}, s[32:33], 0")
    srd(sC, 16, 4718592)
    srd(sD, 24, 5308416)
    srd(sWS, 32, 536870912)
    e(f"s_cmp_eq_u32 s{sW}, 10")
    e("s_cbranch_scc1 L_w10")
    srd(sA, 10, 134217728)
    srd(sB, 12, 134217728)
    e("s_setprio 1")
    e("s_mov_b32 m0, s70")
    e("s_barrier")
    for u in range(8):
        if u == 4:
            e("s_add_u32 m0, s70, 4096"); e("s_nop 0")
        so = "s69" if u < 4 else "s71"
        e(f"buffer_load_dwordx4 v{KA+(u&3)}, s[{sA}:{sA+3}], {so} offen offset:{1024*(u&3)} nt lds")
    for u in range(8):
        so = "s69" if u < 4 else "s71"
        e(f"buffer_load_dwordx4 v[{VD+4*u}:{VD+4*u+3}], v{vL16}, s[{sB}:{sB+3}], {so} offen offset:{1024*(u&3)} nt")
    stamp(1)
    e("s_setprio 0")
    e("s_branch L_late")
    lab("L_w10")
    e("s_getpc_b64 s[72:73]")
    lab("L_pc")
    e("s_sub_u32 s72, s72, L_pc-L_start")
    e("s_subb_u32 s73, s73, 0")
    e(f"v_lshlrev_b32 v{vT0}, 7, v{vLane}")
    e(f"v_min_u32 v{vT0}, L_codeend-L_start-4, v{vT0}")
    e(f"global_load_dword v{vT1}, v{vT0}, s[72:73]")
    srd(sA, 8, 1152)
    srd(sB, 28, 1152)
    e(f"v_lshlrev_b32 v{vT2}, 5, v{vLane}")
    e(f"buffer_load_dwordx4 v[{VD}:{VD+3}], v{vT2}, s[{sA}:{sA+3}], 0 offen")
    e(f"buffer_load_dwordx4 v[{VD+4}:{VD+7}], v{vT2}, s[{sA}:{sA+3}], 0 offen offset:16")
    e(f"buffer_load_dwordx4 v[{VD+8}:{VD+11}], v{vT2}, s[{sB}:{sB+3}], 0 offen")
    e(f"buffer_load_dwordx4 v[{VD+12}:{VD+15}], v{vT2}, s[{sB}:{sB+3}], 0 offen offset:16")
    e("s_barrier")
    e(f"v_mov_b32 v{vGg}, 0")
    e("s_waitcnt vmcnt(0)")
    for k in range(8):
        e(f"v_dot2_f32_bf16 v{vGg}, v{VD+k}, v{VD+8+k}, v{vGg}")
    e("s_nop 2")
    for sh in (8, 4, 2, 1):
        e(f"v_add_f32_dpp v{vGg}, v{vGg}, v{vGg} row_ror:{sh} {DPP}")
        e("s_nop 1")
    xrow_op("v_add_f32", vGg, vT0)
    e(f"v_mul_f32 v{vGg}, {f32(-math.log2(math.e))}, v{vGg}")
    e(f"v_exp_f32 v{vGg}, v{vGg}")
    e("s_nop 0")
    e(f"v_add_f32 v{vGg}, 1.0, v{vGg}")
    e(f"v_rcp_f32 v{vGg}, v{vGg}")
    e(f"v_mov_b32 v{vT0}, {L_G}")
    e("s_mov_b64 exec, 1")
    e(f"ds_write_b32 v{vT0}, v{vGg}")
    e("s_mov_b64 exec, -1")
    stamp(1)
    lab("L_late")
    for u in range(3):
        e(f"buffer_load_dwordx4 v[{LD+8+4*u}:{LD+11+4*u}], v{vW2}, s[{sD}:{sD+3}], s68 offen offset:{1152*u} nt")
    for u in range(2):
        e(f"buffer_load_dwordx4 v[{LD+4*u}:{LD+3+4*u}], v{vWO}, s[{sC}:{sC+3}], s66 offen offset:{1152*u} nt")
    stamp(2)
    selsetup()
    e("s_waitcnt lgkmcnt(0)")
    tagsetup()
    e(f"v_lshl_add_u32 v{vA0}, v{vJ}, 1, v{vG}")
    e(f"v_lshlrev_b32 v{vA0}, 12, v{vA0}")
    e("s_and_b32 s74, s2, 7")
    e("s_lshl_b32 s74, s74, 5")
    e("s_lshr_b32 s75, s2, 3")
    e("s_add_u32 s74, s74, s75")
    e("s_lshl_b32 s74, s74, 4")
    e(f"s_lshl_b32 s75, s{sKW}, 16")
    e("s_add_u32 s74, s74, s75")
    e(f"s_add_u32 s74, s74, {FP}")
    e(f"v_min_u32 v{vHA}, 5, v{vSub}")
    e(f"v_mul_u32_u24 v{vHA}, 6, v{vHA}")
    e("s_and_b32 s75, s2, 1")
    e("s_lshl_b32 s75, s75, 2")
    e(f"s_add_u32 s75, s75, {L_H}")
    e(f"v_add_u32 v{vHA}, s75, v{vHA}")
    e(f"v_lshlrev_b32 v{vA1}, 2, v{vSub}")
    e(f"v_add_u32 v{vA1}, {L_O}, v{vA1}")
    e(f"s_cmp_eq_u32 s{sW}, 10")
    e("s_cbranch_scc0 L_attn")
    e("s_waitcnt lgkmcnt(0)")
    e("s_barrier")
    e("s_barrier")
    e("s_branch L_b2")
    lab("L_attn")
    e(f"v_and_b32 v{vT0}, 3, v{vN}")
    e(f"v_lshrrev_b32 v{vT1}, 2, v{vN}")
    e(f"v_lshl_add_u32 v{vT0}, v{vT0}, 2, v{vT1}")
    e(f"v_xor_b32 v{vT1}, v{vG}, v{vN}")
    e(f"v_lshlrev_b32 v{vT1}, 4, v{vT1}")
    e(f"v_lshl_add_u32 v{vT0}, v{vT0}, 8, v{vT1}")
    e(f"v_add_u32 v{KA}, s70, v{vT0}")
    for k in range(1, 4): e(f"v_xor_b32 v{KA+k}, {64*k}, v{KA}")
    e(f"v_lshrrev_b32 v{vT0}, 3, v{vN}")
    e(f"v_lshlrev_b32 v{vT1}, 8, v{vT0}")
    e(f"v_lshl_add_u32 v{vT1}, v{vG}, 4, v{vT1}")
    e(f"v_add_u32 v{vT1}, {L_Q}, v{vT1}")
    e(f"v_lshlrev_b32 v{vMX2}, 5, v{vT0}")
    e(f"v_add_u32 v{vMX2}, {L_MX}, v{vMX2}")
    e(f"s_lshl_b32 s75, s{sKW}, 2")
    e(f"v_add_u32 v{vT2}, s75, v{vMX2}")
    e("s_waitcnt vmcnt(13)")
    stamp(3)
    for t in range(2):
        for k in range(4):
            r = KF + 16 * t + 4 * k
            e(f"ds_read_b128 v[{r}:{r+3}], v{KA+k} offset:{4096*t}")
    e("s_barrier")
    stamp(4)
    for k in range(4):
        e(f"ds_read_b128 v[{QF+4*k}:{QF+4*k+3}], v{vT1} offset:{64*k}")
    e("s_waitcnt lgkmcnt(0)")
    for k in range(4):
        for t in range(2):
            mfma(S + 4 * t, KF + 16 * t + 4 * k, QF + 4 * k, "0" if k == 0 else None)
    e("s_nop 7")
    vMx = QF
    e(f"v_max3_f32 v{vMx}, v{S}, v{S+1}, v{S+2}")
    e(f"v_max3_f32 v{vMx+1}, v{S+3}, v{S+4}, v{S+5}")
    e(f"v_max3_f32 v{vMx}, v{vMx}, v{S+6}, v{S+7}")
    e(f"v_max_f32 v{vMx}, v{vMx}, v{vMx+1}")
    xrow_op("v_max_f32", vMx, vMx + 1)
    e("s_mov_b64 exec, 0x101")
    e(f"ds_write_b32 v{vT2}, v{vMx}")
    e("s_mov_b64 exec, -1")
    e("s_waitcnt lgkmcnt(0)")
    e("s_barrier")
    e(f"ds_read_b128 v[{QF}:{QF+3}], v{vMX2}")
    e(f"ds_read_b128 v[{QF+4}:{QF+7}], v{vMX2} offset:16")
    e(f"v_mov_b32 v{QF+8}, {f32(CS)}")
    e("s_waitcnt lgkmcnt(0)")
    e(f"v_max3_f32 v{QF}, v{QF}, v{QF+1}, v{QF+2}")
    e(f"v_max3_f32 v{QF+3}, v{QF+3}, v{QF+4}, v{QF+5}")
    e(f"v_max3_f32 v{QF}, v{QF}, v{QF+6}, v{QF+7}")
    e(f"v_max_f32 v{QF}, v{QF}, v{QF+3}")
    e(f"v_mul_f32 v{QF}, v{QF+8}, v{QF}")
    e(f"v_perm_b32 v{QF}, v{QF}, v{vTag}, s{sTS}")
    for j in range(8): e(f"v_fma_f32 v{S+j}, v{S+j}, v{QF+8}, -v{QF}")
    for j in range(8): e(f"v_exp_f32 v{S+j}, v{S+j}")
    e("s_nop 0")
    for j in range(4): e(f"v_cvt_pk_bf16_f32 v{QF+4+j}, v{S+2*j}, v{S+2*j+1}")
    for u in range(8):
        abuild(KF + 4 * u, QF + 4 + (u >> 1), u & 1)
    for j in range(4): e(f"v_add_f32 v{S+j}, v{S+j}, v{S+4+j}")
    e(f"v_add_f32 v{S}, v{S}, v{S+1}")
    e(f"v_add_f32 v{S+2}, v{S+2}, v{S+3}")
    e(f"v_add_f32 v{S}, v{S}, v{S+2}")
    xrow_op("v_add_f32", S, S + 1)
    e("s_mov_b64 exec, 0x101")
    e(f"ds_write_b32 v{vT2}, v{S} offset:64")
    e("s_mov_b64 exec, -1")
    e(f"s_lshl_b32 s75, s{sKW}, 10")
    e(f"s_add_u32 s75, s75, {L_OP}")
    e(f"v_add_u32 v{vT0}, s75, v{vL16}")
    stamp(5)
    for u in range(8):
        e(f"s_waitcnt vmcnt({12-u})")
        mfma(ACC, KF + 4 * u, VD + 4 * u, "0" if u == 0 else None)
    e("s_nop 7")
    e(f"ds_write_b128 v{vT0}, v[{ACC}:{ACC+3}]")
    e("s_waitcnt lgkmcnt(0)")
    lab("L_b2")
    stamp(6)
    e("s_barrier")
    for u in range(3):
        e(f"ds_read_u16 v{HV+u}, v{vHA} offset:{2*u}")
    e(f"v_mov_b32 v{vT0}, {L_G}")
    e(f"ds_read_b32 v{vGg}, v{vT0}")
    e("s_waitcnt lgkmcnt(0)")
    for u in range(3):
        abuild(KF + 4 * u, HV + u, 0)
    e(f"v_sub_f32 v{vGg}, 1.0, v{vGg}")
    for u in range(3):
        e(f"s_waitcnt vmcnt({4-u})")
        mfma(ACC, KF + 4 * u, LD + 8 + 4 * u, "0" if u == 0 else None)
    e("s_nop 7")
    for r in range(4): e(f"v_mul_f32 v{ACC+r}, v{ACC+r}, v{vGg}")
    e("s_waitcnt vmcnt(0)")
    stamp(7)
    e("s_barrier")
    e(f"ds_read_b32 v{HV}, v{vA1}")
    e("s_waitcnt lgkmcnt(0)")
    abuild(KF, HV, 0)
    abuild(KF + 4, HV, 1)
    mfma(ACC, KF, LD)
    e("s_nop 0")
    mfma(ACC, KF + 4, LD + 4)
    e("s_nop 7")
    halfadd_tag_store(74)
    stamp(8)

    lab("L_fin")
    if stamps:
        e("s_waitcnt vmcnt(0)")
        stamp(9)
        e("s_waitcnt lgkmcnt(0)")
        for i in range(20): e(f"v_mov_b32 v{32+i}, s{80+i}")
        e("v_mov_b32 v9, 0")
        e(f"s_mul_i32 s66, s2, {NW}")
        e(f"s_add_u32 s66, s66, s{sW}")
        e("s_mul_i32 s66, s66, 80")
        e(f"s_add_u32 s66, s66, {STAMP}")
        e("s_mov_b64 exec, 1")
        for i in range(5):
            e(f"buffer_store_dwordx4 v[{32+4*i}:{35+4*i}], v9, s[{sWS}:{sWS+3}], s66 offen offset:{16*i}")
    lab("L_end")
    e("s_endpgm")
    lab("L_codeend")
    txt = header(256, NW * 64, LDS_BYTES) + "\n".join(L) + "\n" + footer(152, 100)
    open(out, "w").write(txt)

if __name__ == "__main__":
    gen("k1.s", stamps=False)
    gen("k1s.s", stamps=True)
```

```python
import sys, math, struct
from gen_common import *

def f32(x):
    return "0x%08x" % struct.unpack("<I", struct.pack("<f", x))[0]

QP = 0x10000; HP = 0x20000; OP = 0x40000; FP = 0x100000; STAMP = 0x10000000
L_Q = 0; L_MX = 512; L_LS = L_MX + 64; L_H = 640; L_O = 768; L_G = 832; L_FLAG = 848; L_F = 896
L_OP = 2048
L_WO = L_OP + 8192
L_W2 = L_WO + 18432
L_K = 65536
LDS_BYTES = L_K + 65536
assert L_W2 + 21504 <= L_K
NW = 11
SPIN_MAX = 200000

def gen(out, stamps=False, W=4, NTH=11, HASH=0x9E3779B1):
    L = []
    def e(s): L.append("    " + s)
    def lab(s): L.append(s + ":")
    def stamp(i):
        if stamps: e(f"s_memrealtime s[{80+2*i}:{81+2*i}]")
    def srd(d, b, n):
        e(f"s_mov_b64 s[{d}:{d+1}], s[{b}:{b+1}]"); e(f"s_mov_b32 s{d+2}, {n}"); e(f"s_mov_b32 s{d+3}, 0x20000")
    vLane, vN, vG, vSub, vJ, vTag, vL16, vT0, vT1, vT2, vT3 = 2, 3, 4, 5, 6, 7, 8, 9, 10, 11, 12
    vA0, vA1, vZ = 13, 14, 15
    SEL = 16; ACC = 24; TMP = 28
    sW, sH, sS, sTag = 3, 35, 36, 34
    sA, sB, sC, sD, sWS = 40, 44, 48, 52, 56
    sTS = 60; sCK = 64
    def tagsetup():
        e(f"s_add_u32 s{sTag}, s{sTag}, 0x01010101")
        e(f"v_mov_b32 v{vTag}, s{sTag}")
    def tag4(dst, src):
        for k in range(4):
            e(f"v_perm_b32 v{dst+k}, v{src+k}, v{vTag}, s{sTS+k}")
    def check4(src, dst):
        e(f"v_perm_b32 v{dst}, v{src+1}, v{src}, s{sCK}")
        e(f"v_perm_b32 v{dst+1}, v{src+3}, v{src+2}, s{sCK}")
        e(f"v_lshl_or_b32 v{dst}, v{dst+1}, 16, v{dst}")
    def selsetup():
        e(f"v_and_b32 v{vT0}, 1, v{vLane}")
        e(f"v_cmp_eq_u32 vcc, 1, v{vT0}")
        e(f"v_mov_b32 v{vT1}, 0x0c0c0100"); e(f"v_mov_b32 v{vT2}, 0x01000c0c")
        e(f"v_cndmask_b32 v{vT1}, v{vT1}, v{vT2}, vcc")
        e(f"v_mov_b32 v{vT2}, 0x0c0c0302"); e(f"v_mov_b32 v{vT3}, 0x03020c0c")
        e(f"v_cndmask_b32 v{vT2}, v{vT2}, v{vT3}, vcc")
        e(f"v_mov_b32 v{vT3}, 0x0c0c0c0c")
        e(f"v_lshrrev_b32 v{vT0}, 1, v{vJ}")
        for w in range(4):
            e(f"v_cmp_eq_u32 vcc, {w}, v{vT0}")
            e(f"s_mov_b32 s{sTS+w}, 0x0706050{w}")
            e("s_nop 0")
            e(f"v_cndmask_b32 v{SEL+w}, v{vT3}, v{vT1}, vcc")
            e(f"v_cndmask_b32 v{SEL+4+w}, v{vT3}, v{vT2}, vcc")
        e(f"s_mov_b32 s{sCK}, 0x0c0c0400")
    def abuild(dst, src, par):
        for w in range(4):
            e(f"v_perm_b32 v{dst+w}, v{src}, v{src}, v{SEL+4*par+w}")
    def mfma(d, a, b, c=None):
        cs = f"v[{d}:{d+3}]" if c is None else c
        e(f"v_mfma_f32_16x16x32_bf16 v[{d}:{d+3}], v[{a}:{a+3}], v[{b}:{b+3}], {cs}")
    DPP = "row_mask:0xf bank_mask:0xf"
    def halfadd_tag_store(soff):
        for r in range(4):
            e(f"v_permlane32_swap_b32 v{ACC+r}, v{TMP+r}")
        for r in range(4):
            e(f"v_add_f32_dpp v{ACC+r}, v{TMP+r}, v{ACC+r} row_ror:8 {DPP}")
        tag4(ACC, ACC)
        e("s_mov_b64 exec, 0x00ff00ff")
        e(f"buffer_store_dwordx4 v[{ACC}:{ACC+3}], v{vA0}, s[{sWS}:{sWS+3}], s{soff} offen sc1")
        e("s_mov_b64 exec, -1")
    def spin_tail(loop, done, cnt):
        e(f"s_cbranch_vccz {done}")
        e(f"s_add_u32 s{cnt}, s{cnt}, 1")
        e(f"s_cmp_lt_u32 s{cnt}, {SPIN_MAX}")
        e(f"s_cbranch_scc1 {loop}")
        lab(done)
    def xrow_op(op, x, t):
        e(f"v_mov_b32 v{t}, v{x}")
        e("s_nop 1")
        e(f"v_permlane16_swap_b32 v{t}, v{x}")
        e(f"{op} v{x}, v{x}, v{t}")
        e(f"v_mov_b32 v{t}, v{x}")
        e("s_nop 1")
        e(f"v_permlane32_swap_b32 v{t}, v{x}")
        e(f"{op} v{x}, v{x}, v{t}")
    def pkadd(d, a, b):
        e(f"v_pk_add_f32 v[{d}:{d+1}], v[{a}:{a+1}], v[{b}:{b+1}]")
        e(f"v_pk_add_f32 v[{d+2}:{d+3}], v[{a+2}:{a+3}], v[{b+2}:{b+3}]")

    lab("L_start")
    stamp(0)
    e("s_cmp_ge_u32 s2, 256")
    e("s_cbranch_scc1 L_end")
    e("s_load_dwordx16 s[8:23], s[0:1], 0")
    e("s_load_dwordx8 s[24:31], s[0:1], 64")
    e("s_load_dwordx2 s[32:33], s[0:1], 104")
    e("v_lshrrev_b32 v1, 6, v0")
    e(f"v_and_b32 v{vLane}, 63, v0")
    e(f"v_readfirstlane_b32 s{sW}, v1")
    e(f"v_and_b32 v{vN}, 15, v{vLane}")
    e(f"v_lshrrev_b32 v{vG}, 4, v{vLane}")
    e(f"v_lshrrev_b32 v{vT0}, 3, v{vN}")
    e(f"v_lshl_add_u32 v{vSub}, v{vT0}, 2, v{vG}")
    e(f"v_and_b32 v{vJ}, 7, v{vLane}")
    e(f"v_lshlrev_b32 v{vL16}, 4, v{vLane}")
    e(f"v_mov_b32 v{vZ}, 0")
    e(f"s_and_b32 s{sH}, s2, 7")
    e(f"s_lshl_b32 s{sH}, s{sH}, 1")
    e("s_bfe_u32 s65, s2, 0x10003")
    e(f"s_add_u32 s{sH}, s{sH}, s65")
    e(f"s_lshr_b32 s{sS}, s2, 4")
    e(f"s_cmp_ge_u32 s{sW}, 2")
    e("s_cbranch_scc1 L_kv")

    X = 32; AB = 44; B1 = 52; WD = 56
    e("s_setprio 3")
    e(f"s_cmp_eq_u32 s{sW}, 0")
    e("s_cbranch_scc0 L_p1_w1")
    e(f"s_mov_b32 s66, {18*8192}"); e("s_mov_b32 s67, 8192"); e("s_mov_b32 s71, 36")
    e("s_bfe_u32 s72, s2, 0x20001")
    e("s_lshr_b32 s73, s2, 3")
    e("s_lshl_b32 s73, s73, 1")
    e("s_and_b32 s74, s2, 1")
    e("s_add_u32 s73, s73, s74")
    e(f"s_mul_i32 s68, s72, {144*8192}")
    e("s_lshl_b32 s74, s73, 7")
    e("s_add_u32 s68, s68, s74")
    e("s_mul_i32 s69, s72, 288")
    e("s_lshr_b32 s70, s73, 2")
    e("s_lshl_b32 s70, s70, 12")
    e("s_and_b32 s74, s73, 3")
    e("s_lshl_b32 s74, s74, 8")
    e("s_add_u32 s70, s70, s74")
    e("s_lshl_b32 s74, s72, 10")
    e("s_add_u32 s70, s70, s74")
    e(f"s_add_u32 s70, s70, {QP}")
    e("s_waitcnt lgkmcnt(0)")
    srd(sA, 14, 4718592)
    e("s_branch L_p1_common")
    lab("L_p1_w1")
    e(f"s_mov_b32 s66, {24*9216}"); e("s_mov_b32 s67, 9216"); e("s_mov_b32 s71, 48")
    e("s_mov_b32 s72, 0")
    e("s_cmp_ge_u32 s2, 72"); e("s_addc_u32 s72, s72, 0")
    e("s_cmp_ge_u32 s2, 144"); e("s_addc_u32 s72, s72, 0")
    e("s_mul_i32 s73, s72, 72")
    e("s_sub_u32 s73, s2, s73")
    e(f"s_mul_i32 s68, s72, {192*9216}")
    e("s_lshl_b32 s74, s73, 7")
    e("s_add_u32 s68, s68, s74")
    e("s_mul_i32 s69, s72, 384")
    e("s_mul_i32 s70, s72, 18432")
    e("s_lshl_b32 s74, s73, 8")
    e("s_add_u32 s70, s70, s74")
    e(f"s_add_u32 s70, s70, {HP}")
    e("s_waitcnt lgkmcnt(0)")
    srd(sA, 20, 5308416)
    lab("L_p1_common")
    srd(sB, 8, 1152)
    e(f"v_mul_lo_u32 v{vA0}, v{vSub}, s66")
    e(f"v_lshl_add_u32 v{vA0}, v{vJ}, 4, v{vA0}")
    e(f"v_mul_lo_u32 v{vA1}, v{vSub}, s71")
    e(f"s_cmp_eq_u32 s{sW}, 0")
    e("s_cbranch_scc1 L_p1_ld")
    srd(sC, 22, 9216)
    e("s_mul_i32 s75, s2, 18")
    e("s_lshr_b32 s75, s75, 2")
    e("s_lshl_b32 s76, s75, 3")
    e(f"v_lshlrev_b32 v{vT0}, 3, v{vLane}")
    e(f"buffer_load_dwordx2 v[{B1}:{B1+1}], v{vT0}, s[{sC}:{sC+3}], s76 offen")
    e("s_cmp_ge_u32 s2, 216")
    e("s_cbranch_scc1 L_p1_b0")
    lab("L_p1_ld")
    for k in range(3):
        e(f"buffer_load_dwordx4 v[{X+4*k}:{X+4*k+3}], v{vA1}, s[{sB}:{sB+3}], s69 offen offset:{16*k}")
    e(f"s_cmp_eq_u32 s{sW}, 0")
    e("s_cbranch_scc1 L_p1_ld18")
    e(f"s_add_u32 s74, s68, {18*9216}")
    for u in range(18, 24):
        e(f"buffer_load_dwordx4 v[{WD+4*u}:{WD+4*u+3}], v{vA0}, s[{sA}:{sA+3}], s74 offen nt")
        if u < 23: e("s_add_u32 s74, s74, s67")
    lab("L_p1_ld18")
    for u in range(18):
        e(f"buffer_load_dwordx4 v[{WD+4*u}:{WD+4*u+3}], v{vA0}, s[{sA}:{sA+3}], s68 offen nt")
        if u < 17: e("s_add_u32 s68, s68, s67")
    lab("L_p1_b0")
    stamp(1)
    e("s_barrier")
    e(f"s_load_dword s{sTag}, s[32:33], 0")
    srd(sWS, 32, 536870912)
    for r in range(4): e(f"v_mov_b32 v{ACC+r}, 0")
    selsetup()
    e(f"v_lshl_add_u32 v{vA0}, v{vG}, 3, v{vJ}")
    e(f"v_lshlrev_b32 v{vA0}, 4, v{vA0}")
    e("s_waitcnt lgkmcnt(0)")
    tagsetup()
    e(f"s_cmp_eq_u32 s{sW}, 0")
    e("s_cbranch_scc1 L_p1_c18")
    e("s_cmp_ge_u32 s2, 216")
    e("s_cbranch_scc1 L_w1")
    e("s_waitcnt vmcnt(24)")
    for k, u in enumerate(range(18, 24)):
        abuild(AB + 4 * (u & 1), X + (u >> 1), u & 1)
        e(f"s_waitcnt vmcnt({23-k})")
        e("s_nop 0")
        mfma(ACC, AB + 4 * (u & 1), WD + 4 * u)
    lab("L_p1_c18")
    e("s_waitcnt vmcnt(18)")
    for u in range(18):
        abuild(AB + 4 * (u & 1), X + (u >> 1), u & 1)
        e(f"s_waitcnt vmcnt({17-u})")
        e("s_nop 0")
        mfma(ACC, AB + 4 * (u & 1), WD + 4 * u)
    stamp(2)
    e("s_nop 7")
    halfadd_tag_store(70)
    e(f"s_cmp_eq_u32 s{sW}, 0")
    e("s_cbranch_scc1 L_w0")

    lab("L_w1")
    G = 56
    e(f"v_add_u32 v{vT0}, s75, v{vLane}")
    e(f"v_lshrrev_b32 v{vT1}, 4, v{vT0}")
    e(f"v_lshlrev_b32 v{vT1}, 8, v{vT1}")
    e(f"v_and_b32 v{vT2}, 1, v{vT0}")
    e(f"v_lshl_add_u32 v{vT1}, v{vT2}, 7, v{vT1}")
    e(f"v_bfe_u32 v{vT2}, v{vT0}, 1, 3")
    e(f"v_lshl_add_u32 v{vA1}, v{vT2}, 4, v{vT1}")
    e(f"s_mov_b32 s76, {HP}")
    e(f"s_mov_b32 s77, {HP+18432}")
    e(f"s_mov_b32 s78, {HP+2*18432}")
    e("s_mov_b32 s79, 0")
    e("s_mov_b64 exec, 0x1f")
    lab("L_hpoll")
    for k in range(3):
        e(f"buffer_load_dwordx4 v[{G+4*k}:{G+4*k+3}], v{vA1}, s[{sWS}:{sWS+3}], s{76+k} offen sc1")
    e("s_waitcnt vmcnt(0)")
    for k in range(3):
        check4(G + 4 * k, G + 12 + 2 * k)
        e(f"v_xor_b32 v{G+12+2*k}, v{G+12+2*k}, v{vTag}")
    e(f"v_or3_b32 v{G+12}, v{G+12}, v{G+14}, v{G+16}")
    e(f"v_cmp_ne_u32 vcc, 0, v{G+12}")
    spin_tail("L_hpoll", "L_hdone", 79)
    stamp(3)
    e(f"v_lshlrev_b32 v{G+12}, 16, v{B1}")
    e(f"v_and_b32 v{G+13}, 0xffff0000, v{B1}")
    e(f"v_lshlrev_b32 v{G+14}, 16, v{B1+1}")
    e(f"v_and_b32 v{G+15}, 0xffff0000, v{B1+1}")
    pkadd(G, G, G + 4); pkadd(G + 8, G + 8, G + 12); pkadd(G, G, G + 8)
    c1 = -2.0 * math.sqrt(2.0 / math.pi) * math.log2(math.e)
    e(f"v_mov_b32 v{G+12}, {f32(c1)}")
    e(f"v_mov_b32 v{G+13}, {f32(c1 * 0.044715)}")
    for r in range(4): e(f"v_mul_f32 v{G+4+r}, v{G+r}, v{G+r}")
    for r in range(4): e(f"v_fma_f32 v{G+4+r}, v{G+4+r}, v{G+13}, v{G+12}")
    for r in range(4): e(f"v_mul_f32 v{G+4+r}, v{G+4+r}, v{G+r}")
    for r in range(4): e(f"v_exp_f32 v{G+4+r}, v{G+4+r}")
    for r in range(4): e(f"v_add_f32 v{G+4+r}, 1.0, v{G+4+r}")
    for r in range(4): e(f"v_rcp_f32 v{G+4+r}, v{G+4+r}")
    for r in range(4): e(f"v_mul_f32 v{G+r}, v{G+r}, v{G+4+r}")
    e(f"ds_write_b128 v{vL16}, v[{G}:{G+3}] offset:{L_H}")
    e("s_mov_b64 exec, -1")
    e("s_waitcnt lgkmcnt(0)")
    e("s_barrier")
    e("s_branch L_fin")

    lab("L_w0")
    e(f"s_lshl_b32 s76, s{sH}, 12")
    e(f"s_add_u32 s76, s76, {QP}")
    e("s_mov_b32 s79, 0")
    e(f"v_lshlrev_b32 v{vT0}, 7, v{vG}")
    e(f"v_lshl_add_u32 v{vT0}, v{vJ}, 4, v{vT0}")
    e(f"v_and_b32 v{vT1}, 8, v{vLane}")
    e(f"v_add_u32 v{vA0}, v{vT0}, v{vT1}")
    lab("L_qpoll")
    for k in range(4):
        e(f"buffer_load_dwordx4 v[{G+4*k}:{G+4*k+3}], v{vL16}, s[{sWS}:{sWS+3}], s76 offen offset:{1024*k} sc1")
    e("s_waitcnt vmcnt(0)")
    for k in range(4):
        check4(G + 4 * k, G + 16 + 2 * k)
        e(f"v_xor_b32 v{G+16+2*k}, v{G+16+2*k}, v{vTag}")
    e(f"v_or3_b32 v{G+16}, v{G+16}, v{G+18}, v{G+20}")
    e(f"v_or_b32 v{G+16}, v{G+16}, v{G+22}")
    e(f"v_cmp_ne_u32 vcc, 0, v{G+16}")
    spin_tail("L_qpoll", "L_qdone", 79)
    stamp(3)
    pkadd(G, G, G + 4); pkadd(G + 8, G + 8, G + 12); pkadd(G, G, G + 8)
    e(f"v_cvt_pk_bf16_f32 v{G+4}, v{G}, v{G+1}")
    e(f"v_cvt_pk_bf16_f32 v{G+5}, v{G+2}, v{G+3}")
    e(f"ds_write_b64 v{vA0}, v[{G+4}:{G+5}] offset:{L_Q}")
    CS = (128 ** -0.5) * math.log2(math.e)
    vMXA, vG_, vM, vOA, vSA, vGA = 32, 33, 34, 35, 36, 37
    e(f"v_lshrrev_b32 v{vT0}, 3, v{vN}")
    e(f"v_lshlrev_b32 v{vMXA}, 5, v{vT0}")
    e(f"v_lshrrev_b32 v{vT1}, 2, v{vLane}")
    e(f"v_lshlrev_b32 v{vT1}, 10, v{vT1}")
    e(f"v_and_b32 v{vT2}, 3, v{vLane}")
    e(f"v_lshl_add_u32 v{vOA}, v{vT2}, 4, v{vT1}")
    e(f"v_lshlrev_b32 v{vT1}, 10, v{vT0}")
    e(f"v_lshl_add_u32 v{vSA}, v{vT2}, 4, v{vT1}")
    e(f"v_add_u32 v{vSA}, 16384, v{vSA}")
    e(f"v_lshlrev_b32 v{vT1}, 6, v{vN}")
    e(f"v_lshl_add_u32 v{vGA}, v{vG}, 4, v{vT1}")
    e(f"s_lshl_b32 s76, s{sH}, 15")
    e(f"s_add_u32 s76, s76, {OP}")
    e(f"s_lshl_b32 s77, s{sS}, 6")
    e("s_add_u32 s77, s77, s76")
    e(f"s_lshl_b32 s78, s{sS}, 10")
    e("s_add_u32 s78, s78, s76")
    e(f"s_lshr_b32 s74, s{sS}, 3")
    e("s_add_u32 s74, s74, 16")
    e("s_lshl_b32 s74, s74, 10")
    e("s_add_u32 s74, s74, s76")
    e("s_mov_b32 s79, 0")
    e("s_waitcnt lgkmcnt(0)")
    e("s_barrier")
    e(f"ds_read_b32 v{vG_}, v{vZ} offset:{L_G}")
    e("s_barrier")
    e(f"ds_read_b128 v[{G}:{G+3}], v{vMXA} offset:{L_MX}")
    e(f"ds_read_b128 v[{G+4}:{G+7}], v{vMXA} offset:{L_MX+16}")
    e("s_waitcnt lgkmcnt(0)")
    e(f"v_max3_f32 v{G}, v{G}, v{G+1}, v{G+2}")
    e(f"v_max3_f32 v{G+3}, v{G+3}, v{G+4}, v{G+5}")
    e(f"v_max3_f32 v{G}, v{G}, v{G+6}, v{G+7}")
    e(f"v_max_f32 v{G}, v{G}, v{G+3}")
    e(f"v_mul_f32 v{vM}, {f32(CS)}, v{G}")
    ST = 40
    e(f"v_perm_b32 v{ST}, v{vM}, v{vTag}, s{sTS}")
    e(f"v_perm_b32 v{ST+2}, v{vM}, v{vTag}, s{sTS+2}")
    e(f"v_perm_b32 v{ST+3}, v{vM}, v{vTag}, s{sTS+3}")
    e(f"v_lshlrev_b32 v{vA0}, 3, v{vG}")
    e("s_barrier")
    for k in range(8):
        e(f"ds_read_b128 v[{G+4*k}:{G+4*k+3}], v{vL16} offset:{L_OP+1024*k}")
    e(f"ds_read_b128 v[{G+32}:{G+35}], v{vMXA} offset:{L_LS}")
    e(f"ds_read_b128 v[{G+36}:{G+39}], v{vMXA} offset:{L_LS+16}")
    e("s_waitcnt lgkmcnt(8)"); pkadd(G, G, G + 4)
    e("s_waitcnt lgkmcnt(6)"); pkadd(G + 8, G + 8, G + 12); pkadd(G, G, G + 8)
    e("s_waitcnt lgkmcnt(4)"); pkadd(G + 16, G + 16, G + 20); pkadd(G, G, G + 16)
    e("s_waitcnt lgkmcnt(2)"); pkadd(G + 24, G + 24, G + 28); pkadd(G, G, G + 24)
    tag4(G, G)
    e(f"buffer_store_dwordx4 v[{G}:{G+3}], v{vOA}, s[{sWS}:{sWS+3}], s77 offen sc1")
    e("s_waitcnt lgkmcnt(0)")
    pkadd(G + 32, G + 32, G + 36)
    e(f"v_pk_add_f32 v[{G+32}:{G+33}], v[{G+32}:{G+33}], v[{G+34}:{G+35}]")
    e(f"v_add_f32 v{G+32}, v{G+32}, v{G+33}")
    e(f"v_perm_b32 v{ST+1}, v{G+32}, v{vTag}, s{sTS+1}")
    e("s_mov_b64 exec, 0x0f0f")
    e(f"buffer_store_dwordx4 v[{ST}:{ST+3}], v{vSA}, s[{sWS}:{sWS+3}], s77 offen sc1")
    e("s_mov_b64 exec, -1")
    stamp(5)
    O2 = G + 8
    lab("L_opoll")
    e(f"buffer_load_dwordx4 v[{O2}:{O2+3}], v{vGA}, s[{sWS}:{sWS+3}], s78 offen sc1")
    e(f"buffer_load_dwordx4 v[{O2+4}:{O2+7}], v{vGA}, s[{sWS}:{sWS+3}], s74 offen sc1")
    e("s_waitcnt vmcnt(0)")
    check4(O2, O2 + 8)
    check4(O2 + 4, O2 + 10)
    e(f"v_xor_b32 v{O2+8}, v{O2+8}, v{vTag}")
    e(f"v_xor_b32 v{O2+10}, v{O2+10}, v{vTag}")
    e(f"v_or_b32 v{O2+8}, v{O2+8}, v{O2+10}")
    e(f"v_cmp_ne_u32 vcc, 0, v{O2+8}")
    spin_tail("L_opoll", "L_odone", 79)
    stamp(6)
    m, l, M = O2 + 4, O2 + 5, O2 + 8
    e(f"v_max_f32_dpp v{M}, v{m}, v{m} row_ror:8 {DPP}")
    for sh in (4, 2, 1):
        e("s_nop 1")
        e(f"v_max_f32_dpp v{M}, v{M}, v{M} row_ror:{sh} {DPP}")
    e(f"v_sub_f32 v{M}, v{m}, v{M}")
    e(f"v_exp_f32 v{M}, v{M}")
    e("s_nop 0")
    e(f"v_mul_f32 v{l}, v{l}, v{M}")
    for r in range(4): e(f"v_mul_f32 v{O2+r}, v{O2+r}, v{M}")
    for sh in (8, 4, 2, 1):
        e(f"v_add_f32_dpp v{l}, v{l}, v{l} row_ror:{sh} {DPP}")
        if sh == 1:
            e(f"v_rcp_f32 v{l}, v{l}")
        for r in range(4): e(f"v_add_f32_dpp v{O2+r}, v{O2+r}, v{O2+r} row_ror:{sh} {DPP}")
    e(f"v_mul_f32 v{l}, v{l}, v{vG_}")
    for r in range(4): e(f"v_mul_f32 v{O2+r}, v{O2+r}, v{l}")
    e(f"v_cvt_pk_bf16_f32 v{O2}, v{O2}, v{O2+1}")
    e(f"v_cvt_pk_bf16_f32 v{O2+1}, v{O2+2}, v{O2+3}")
    e("s_mov_b32 exec_lo, 0x00010001")
    e("s_mov_b32 exec_hi, 0x00010001")
    e(f"ds_write_b64 v{vA0}, v[{O2}:{O2+1}] offset:{L_O}")
    e("s_mov_b64 exec, -1")
    e("s_waitcnt lgkmcnt(0)")
    e("s_barrier")
    stamp(7)
    e("s_branch L_fin")

    lab("L_kv")
    VD = 32
    LD = 64
    KF = 84
    QF = 116
    S = 132
    KA = 140
    vWO, vW2, vMX2, vHA, vGg, vB2, vOPW, vW2b = 144, 145, 146, 147, 148, 149, 150, 151
    HV = 152
    sKW = 37
    sSO = 66
    e(f"s_sub_u32 s{sKW}, s{sW}, 2")
    e(f"s_cmp_eq_u32 s{sW}, 10")
    e("s_cbranch_scc1 L_w10")
    e(f"v_lshlrev_b32 v{vT0}, 2, v{vG}")
    e(f"v_xor_b32 v{vT0}, v{vT0}, v{vN}")
    e(f"v_lshlrev_b32 v{vT0}, 4, v{vT0}")
    e(f"v_lshl_add_u32 v{KA}, v{vG}, 8, v{vT0}")
    for u in range(1, 4): e(f"v_xor_b32 v{KA+u}, {16*u}, v{KA}")
    e(f"s_lshl_b32 s74, s{sH}, 23")
    e(f"s_lshl_b32 s75, s{sS}, 16")
    e("s_add_u32 s74, s74, s75")
    e(f"s_add_u32 s74, s74, {28672*256}")
    e(f"s_mul_i32 s75, s2, {HASH}")
    e("s_lshr_b32 s75, s75, 26")
    e(f"s_lshl_b32 s76, s{sKW}, 3")
    e("s_xor_b32 s75, s75, s76")
    e("s_lshl_b32 s75, s75, 10")
    e("s_add_u32 s75, s75, s74")
    for u in range(8):
        e(f"s_xor_b32 s{sSO+u}, s75, {1024*u}")
    e(f"s_lshl_b32 s38, s{sKW}, 13")
    e(f"s_add_u32 s38, s38, {L_K}")
    e("s_mov_b32 m0, s38")
    e("s_waitcnt lgkmcnt(0)")
    srd(sA, 10, 134217728)
    srd(sB, 12, 134217728)
    e("s_barrier")
    n = 0
    for u in range(8):
        if W and n >= W and n < NTH: e(f"s_waitcnt vmcnt({W-1})")
        e(f"buffer_load_dwordx4 v{KA+(u&3)}, s[{sA}:{sA+3}], s{sSO+u} offen nt lds")
        n += 1
        if u < 7:
            e("s_add_u32 m0, m0, 1024")
            if not (W and n >= W and n < NTH): e("s_nop 0")
        if u == W - 1 or (not W and u == 7):
            e(f"s_load_dword s{sTag}, s[32:33], 0")
            srd(sWS, 32, 536870912)
            selsetup()
    for u in range(8):
        if W and n >= W and n < NTH: e(f"s_waitcnt vmcnt({W-1})")
        e(f"buffer_load_dwordx4 v[{VD+4*u}:{VD+4*u+3}], v{vL16}, s[{sB}:{sB+3}], s{sSO+u} offen nt")
        n += 1
    stamp(1)
    e("s_branch L_common")
    lab("L_w10")
    e("s_getpc_b64 s[72:73]")
    lab("L_pc")
    e("s_sub_u32 s72, s72, L_pc-L_start")
    e("s_subb_u32 s73, s73, 0")
    e(f"v_lshlrev_b32 v{vT0}, 7, v{vLane}")
    e(f"v_min_u32 v{vT0}, L_codeend-L_start-4, v{vT0}")
    e(f"global_load_dword v{vT1}, v{vT0}, s[72:73]")
    e(f"ds_write_b32 v{vZ}, v{vZ} offset:{L_FLAG}")
    e(f"v_lshlrev_b32 v{vT2}, 5, v{vLane}")
    e("s_waitcnt lgkmcnt(0)")
    srd(sA, 8, 1152)
    srd(sB, 28, 1152)
    e(f"buffer_load_dwordx4 v[{VD}:{VD+3}], v{vT2}, s[{sA}:{sA+3}], 0 offen")
    e(f"buffer_load_dwordx4 v[{VD+4}:{VD+7}], v{vT2}, s[{sA}:{sA+3}], 0 offen offset:16")
    e(f"buffer_load_dwordx4 v[{VD+8}:{VD+11}], v{vT2}, s[{sB}:{sB+3}], 0 offen")
    e(f"buffer_load_dwordx4 v[{VD+12}:{VD+15}], v{vT2}, s[{sB}:{sB+3}], 0 offen offset:16")
    e("s_barrier")
    e(f"s_load_dword s{sTag}, s[32:33], 0")
    srd(sWS, 32, 536870912)
    e(f"v_mov_b32 v{vGg}, 0")
    e("s_waitcnt vmcnt(0)")
    for k in range(8):
        e(f"v_dot2_f32_bf16 v{vGg}, v{VD+k}, v{VD+8+k}, v{vGg}")
    e("s_nop 2")
    for sh in (8, 4, 2, 1):
        e(f"v_add_f32_dpp v{vGg}, v{vGg}, v{vGg} row_ror:{sh} {DPP}")
        e("s_nop 1")
    xrow_op("v_add_f32", vGg, vT0)
    e(f"v_mul_f32 v{vGg}, {f32(-math.log2(math.e))}, v{vGg}")
    e(f"v_exp_f32 v{vGg}, v{vGg}")
    e("s_nop 0")
    e(f"v_add_f32 v{vGg}, 1.0, v{vGg}")
    e(f"v_rcp_f32 v{vGg}, v{vGg}")
    e("s_mov_b64 exec, 1")
    e(f"ds_write_b32 v{vZ}, v{vGg} offset:{L_G}")
    e("s_mov_b64 exec, -1")
    selsetup()
    srd(sA, 16, 4718592)
    srd(sB, 24, 5308416)
    e(f"s_lshl_b32 s66, s{sH}, 4")
    e(f"s_add_u32 s66, s66, s{sS}")
    e(f"s_mul_i32 s66, s66, {16*1152}")
    e(f"s_mul_i32 s67, s2, {18*1152}")
    e(f"v_mov_b32 v{vT0}, 0x7fff0000")
    e(f"v_cmp_gt_u32 vcc, 16, v{vLane}")
    e("s_nop 1")
    e(f"v_cndmask_b32 v{KA}, v{vT0}, v{vL16}, vcc")
    stamp(1)
    lab("L_common")
    e("s_waitcnt lgkmcnt(0)")
    tagsetup()
    e(f"v_lshl_add_u32 v{vT0}, v{vG}, 3, v{vJ}")
    e(f"v_lshrrev_b32 v{vT1}, 2, v{vT0}")
    e(f"v_lshlrev_b32 v{vT1}, 14, v{vT1}")
    e(f"v_and_b32 v{vT0}, 3, v{vT0}")
    e(f"v_lshl_add_u32 v{vA0}, v{vT0}, 4, v{vT1}")
    e("s_and_b32 s74, s2, 7")
    e("s_lshl_b32 s74, s74, 5")
    e("s_lshr_b32 s75, s2, 3")
    e("s_add_u32 s74, s74, s75")
    e("s_lshl_b32 s74, s74, 6")
    e(f"s_lshl_b32 s75, s{sKW}, 16")
    e("s_add_u32 s74, s74, s75")
    e(f"s_add_u32 s74, s74, {FP}")
    e(f"s_lshl_b32 s75, s{sKW}, 7")
    e(f"v_lshl_add_u32 v{vT0}, v{vJ}, 4, s75")
    e(f"v_mul_u32_u24 v{vWO}, {2*1152}, v{vSub}")
    e(f"v_add_u32 v{vWO}, v{vWO}, v{vT0}")
    e(f"v_mul_u32_u24 v{vW2}, 1152, v{vSub}")
    e(f"v_add_u32 v{vW2}, v{vW2}, v{vT0}")
    e(f"v_min_u32 v{vT1}, 1, v{vSub}")
    e(f"v_mul_u32_u24 v{vW2b}, 1152, v{vT1}")
    e(f"v_add_u32 v{vW2b}, v{vW2b}, v{vT0}")
    e("s_and_b32 s75, s2, 1")
    e("s_lshl_b32 s75, s75, 3")
    e(f"v_lshl_add_u32 v{vHA}, v{vSub}, 2, s75")
    e(f"v_lshlrev_b32 v{vA1}, 2, v{vSub}")
    e(f"s_cmp_eq_u32 s{sW}, 10")
    e("s_cbranch_scc0 L_attn")
    e("s_barrier")
    e("s_barrier")
    e(f"s_mov_b32 m0, {L_W2}")
    e("s_nop 0")
    for i in range(21):
        if i and i % 4 == 0:
            e("s_add_u32 m0, m0, 4096"); e("s_add_u32 s67, s67, 4096")
        vo = KA if i == 20 else vL16
        e(f"buffer_load_dwordx4 v{vo}, s[{sB}:{sB+3}], s67 offen offset:{1024*(i%4)} nt lds")
    e(f"s_mov_b32 m0, {L_WO}")
    e("s_nop 0")
    for i in range(18):
        if i and i % 4 == 0:
            e("s_add_u32 m0, m0, 4096"); e("s_add_u32 s66, s66, 4096")
        e(f"buffer_load_dwordx4 v{vL16}, s[{sA}:{sA+3}], s66 offen offset:{1024*(i%4)} nt lds")
    stamp(2)
    e("s_barrier")
    e(f"v_mov_b32 v{vT0}, 1")
    e("s_waitcnt vmcnt(0)")
    e(f"ds_write_b32 v{vZ}, v{vT0} offset:{L_FLAG}")
    e("s_branch L_b2done")
    lab("L_attn")
    e(f"v_and_b32 v{vT0}, 3, v{vN}")
    e(f"v_lshrrev_b32 v{vT1}, 2, v{vN}")
    e(f"v_lshl_add_u32 v{vT0}, v{vT0}, 2, v{vT1}")
    e(f"v_xor_b32 v{vT1}, v{vG}, v{vN}")
    e(f"v_lshlrev_b32 v{vT1}, 4, v{vT1}")
    e(f"v_lshl_add_u32 v{vT0}, v{vT0}, 8, v{vT1}")
    e(f"v_add_u32 v{KA}, s38, v{vT0}")
    for k in range(1, 4): e(f"v_xor_b32 v{KA+k}, {64*k}, v{KA}")
    e("s_waitcnt vmcnt(8)")
    for t in range(2):
        for k in range(4):
            r = KF + 16 * t + 4 * k
            e(f"ds_read_b128 v[{r}:{r+3}], v{KA+k} offset:{4096*t}")
    e(f"v_lshrrev_b32 v{vT0}, 3, v{vN}")
    e(f"v_lshlrev_b32 v{vT1}, 8, v{vT0}")
    e(f"v_lshl_add_u32 v{vT1}, v{vG}, 4, v{vT1}")
    e(f"v_lshlrev_b32 v{vMX2}, 5, v{vT0}")
    e(f"s_lshl_b32 s75, s{sKW}, 2")
    e(f"v_add_u32 v{vT2}, s75, v{vMX2}")
    e(f"v_lshrrev_b32 v{vT0}, 1, v{vG}")
    e(f"v_lshlrev_b32 v{vT0}, 5, v{vT0}")
    e(f"v_lshl_add_u32 v{vT0}, v{vN}, 1, v{vT0}")
    e(f"v_and_b32 v{vT3}, 1, v{vG}")
    e(f"v_add_u32 v{vT0}, v{vT0}, v{vT3}")
    e(f"s_lshl_b32 s75, s{sKW}, 10")
    e(f"v_lshl_add_u32 v{vOPW}, v{vT0}, 4, s75")
    stamp(3)
    e("s_barrier")
    stamp(4)
    for k in range(4):
        e(f"ds_read_b128 v[{QF+4*k}:{QF+4*k+3}], v{vT1} offset:{L_Q+64*k}")
    e("s_waitcnt lgkmcnt(0)")
    for k in range(4):
        for t in range(2):
            mfma(S + 4 * t, KF + 16 * t + 4 * k, QF + 4 * k, "0" if k == 0 else None)
    e("s_nop 7")
    vMx = QF
    e(f"v_max3_f32 v{vMx}, v{S}, v{S+1}, v{S+2}")
    e(f"v_max3_f32 v{vMx+1}, v{S+3}, v{S+4}, v{S+5}")
    e(f"v_max3_f32 v{vMx}, v{vMx}, v{S+6}, v{S+7}")
    e(f"v_max_f32 v{vMx}, v{vMx}, v{vMx+1}")
    xrow_op("v_max_f32", vMx, vMx + 1)
    e("s_mov_b64 exec, 0x101")
    e(f"ds_write_b32 v{vT2}, v{vMx} offset:{L_MX}")
    e("s_mov_b64 exec, -1")
    e("s_waitcnt lgkmcnt(0)")
    e("s_barrier")
    e(f"ds_read_b128 v[{QF}:{QF+3}], v{vMX2} offset:{L_MX}")
    e(f"ds_read_b128 v[{QF+4}:{QF+7}], v{vMX2} offset:{L_MX+16}")
    e(f"v_mov_b32 v{QF+8}, {f32(CS)}")
    e("s_waitcnt lgkmcnt(0)")
    e(f"v_max3_f32 v{QF}, v{QF}, v{QF+1}, v{QF+2}")
    e(f"v_max3_f32 v{QF+3}, v{QF+3}, v{QF+4}, v{QF+5}")
    e(f"v_max3_f32 v{QF}, v{QF}, v{QF+6}, v{QF+7}")
    e(f"v_max_f32 v{QF}, v{QF}, v{QF+3}")
    e(f"v_mul_f32 v{QF}, v{QF+8}, v{QF}")
    e(f"v_perm_b32 v{QF}, v{QF}, v{vTag}, s{sTS}")
    for j in range(8): e(f"v_fma_f32 v{S+j}, v{S+j}, v{QF+8}, -v{QF}")
    for j in range(8): e(f"v_exp_f32 v{S+j}, v{S+j}")
    for j in range(4): e(f"v_cvt_pk_bf16_f32 v{QF+4+j}, v{S+2*j}, v{S+2*j+1}")
    for u in range(8):
        abuild(KF + 4 * u, QF + 4 + (u >> 1), u & 1)
    pkadd(S, S, S + 4)
    e(f"v_pk_add_f32 v[{S}:{S+1}], v[{S}:{S+1}], v[{S+2}:{S+3}]")
    e(f"v_add_f32 v{S}, v{S}, v{S+1}")
    xrow_op("v_add_f32", S, S + 1)
    e("s_mov_b64 exec, 0x101")
    e(f"ds_write_b32 v{vT2}, v{S} offset:{L_LS}")
    e("s_mov_b64 exec, -1")
    stamp(5)
    for u in range(8):
        e(f"s_waitcnt vmcnt({7-u})")
        mfma(ACC, KF + 4 * u, VD + 4 * u, "0" if u == 0 else None)
    e("s_nop 7")
    e(f"ds_write_b128 v{vOPW}, v[{ACC}:{ACC+3}] offset:{L_OP}")
    e("s_waitcnt lgkmcnt(0)")
    stamp(6)
    e("s_barrier")
    lab("L_b2done")
    for u in range(3):
        e(f"ds_read_b32 v{HV+u}, v{vHA} offset:{L_H+32*u}")
    e(f"ds_read_b32 v{vGg}, v{vZ} offset:{L_G}")
    srd(sC, 30, 1152)
    srd(sD, 26, 1152)
    e("s_lshr_b32 s75, s2, 2"); e("s_lshl_b32 s75, s75, 7")
    e("s_and_b32 s76, s2, 1"); e("s_lshl_b32 s76, s76, 6"); e("s_add_u32 s75, s75, s76")
    e("s_and_b32 s76, s2, 2"); e("s_lshl_b32 s76, s76, 2"); e("s_add_u32 s77, s75, s76")
    e(f"v_and_b32 v{vT0}, 3, v{vLane}")
    e(f"v_lshlrev_b32 v{vT0}, 4, v{vT0}")
    e(f"v_bfe_u32 v{vT1}, v{vLane}, 2, 2")
    e(f"v_lshl_add_u32 v{vOPW}, v{vT1}, 1, v{vT0}")
    e("s_cmp_ge_u32 s2, 36")
    e("s_cbranch_scc1 L_nored0")
    e(f"buffer_load_ushort v{vB2}, v{vOPW}, s[{sD}:{sD+3}], s77 offen")
    e(f"buffer_load_ushort v{vT3}, v{vOPW}, s[{sC}:{sC+3}], s77 offen")
    lab("L_nored0")
    e(f"v_cmp_gt_u32 vcc, 2, v{vSub}")
    e("s_waitcnt lgkmcnt(0)")
    e(f"v_sub_f32 v{vGg}, 1.0, v{vGg}")
    e(f"v_cndmask_b32 v{HV+2}, 0, v{HV+2}, vcc")
    for u in range(3): e(f"v_mul_f32 v{HV+u}, v{HV+u}, v{vGg}")
    e(f"v_cvt_pk_bf16_f32 v{HV}, v{HV}, v{HV+1}")
    e(f"v_cvt_pk_bf16_f32 v{HV+1}, v{HV+2}, v{HV+2}")
    abuild(KF, HV, 0); abuild(KF + 4, HV, 1); abuild(KF + 8, HV + 1, 0)
    e("s_mov_b32 s79, 0")
    lab("L_flag")
    e(f"ds_read_b32 v{vT0}, v{vZ} offset:{L_FLAG}")
    e("s_waitcnt lgkmcnt(0)")
    e(f"v_cmp_eq_u32 vcc, 0, v{vT0}")
    e("s_cbranch_vccz L_flagdone")
    e("s_sleep 1")
    e("s_add_u32 s79, s79, 1")
    e(f"s_cmp_lt_u32 s79, {SPIN_MAX*8}")
    e("s_cbranch_scc1 L_flag")
    lab("L_flagdone")
    e(f"ds_read_b128 v[{LD+8}:{LD+11}], v{vW2} offset:{L_W2}")
    e(f"ds_read_b128 v[{LD+12}:{LD+15}], v{vW2} offset:{L_W2+8*1152}")
    e(f"ds_read_b128 v[{LD+16}:{LD+19}], v{vW2b} offset:{L_W2+16*1152}")
    e(f"ds_read_b128 v[{LD}:{LD+3}], v{vWO} offset:{L_WO}")
    e(f"ds_read_b128 v[{LD+4}:{LD+7}], v{vWO} offset:{L_WO+1152}")
    e("s_waitcnt lgkmcnt(0)")
    for u in range(3):
        mfma(ACC, KF + 4 * u, LD + 8 + 4 * u, "0" if u == 0 else None)
    stamp(7)
    e("s_barrier")
    e(f"ds_read_b32 v{HV}, v{vA1} offset:{L_O}")
    e("s_waitcnt lgkmcnt(0)")
    abuild(KF, HV, 0)
    abuild(KF + 4, HV, 1)
    mfma(ACC, KF, LD)
    e("s_nop 0")
    mfma(ACC, KF + 4, LD + 4)
    e("s_nop 7")
    halfadd_tag_store(74)
    stamp(8)
    e("s_cmp_ge_u32 s2, 36")
    e("s_cbranch_scc1 L_fin")
    e(f"s_cmp_eq_u32 s{sW}, 10")
    e("s_cbranch_scc1 L_fin")
    e("s_lshl_b32 s76, s2, 14")
    e(f"s_lshl_b32 s75, s{sKW}, 11")
    e("s_add_u32 s76, s76, s75")
    e(f"s_add_u32 s76, s76, {FP}")
    e("s_mov_b32 s79, 0")
    R = VD
    e("s_mov_b64 s[66:67], -1")
    e("s_mov_b64 s[68:69], -1")
    lab("L_fpoll")
    for k in range(2):
        e(f"s_mov_b64 exec, s[{66+2*k}:{67+2*k}]")
        e(f"s_cbranch_execz L_fp_s{k}")
        e(f"buffer_load_dwordx4 v[{R+4*k}:{R+4*k+3}], v{vL16}, s[{sWS}:{sWS+3}], s76 offen offset:{1024*k} sc1")
        lab(f"L_fp_s{k}")
    e("s_mov_b64 exec, -1")
    e("s_waitcnt vmcnt(0)")
    for k in range(2):
        check4(R + 4 * k, R + 8 + 2 * k)
    for k in range(2):
        e(f"v_cmp_ne_u32 s[{66+2*k}:{67+2*k}], v{R+8+2*k}, v{vTag}")
    e("s_or_b64 vcc, s[66:67], s[68:69]")
    e("s_cbranch_scc0 L_fdone")
    e("s_add_u32 s79, s79, 1")
    e(f"s_cmp_lt_u32 s79, {SPIN_MAX}")
    e("s_cbranch_scc1 L_fpoll")
    lab("L_fdone")
    stamp(2)
    pkadd(R, R, R + 4)
    e(f"v_and_b32 v{vT0}, 3, v{vLane}")
    e(f"v_lshl_add_u32 v{vT0}, v{vG}, 2, v{vT0}")
    e(f"v_permlane32_swap_b32 v{R}, v{R+2}")
    e(f"v_permlane32_swap_b32 v{R+1}, v{R+3}")
    e(f"v_pk_add_f32 v[{R}:{R+1}], v[{R}:{R+1}], v[{R+2}:{R+3}]")
    e(f"s_lshl_b32 s75, s{sKW}, 2")
    e(f"v_lshl_add_u32 v{vT0}, v{vT0}, 5, s75")
    e(f"v_permlane16_swap_b32 v{R}, v{R+1}")
    e(f"v_add_f32 v{R}, v{R}, v{R+1}")
    for sh in (8, 4):
        e("s_nop 1")
        e(f"v_add_f32_dpp v{R}, v{R}, v{R} row_ror:{sh} {DPP}")
    e("s_mov_b32 exec_lo, 0x000f000f")
    e("s_mov_b32 exec_hi, 0x000f000f")
    e(f"ds_write_b32 v{vT0}, v{R} offset:{L_F}")
    e("s_mov_b64 exec, -1")
    e(f"v_lshlrev_b32 v{vT0}, 5, v{vN}")
    e(f"v_lshlrev_b32 v{vB2}, 16, v{vB2}")
    e("s_waitcnt lgkmcnt(0)")
    e("s_barrier")
    e(f"s_cmp_eq_u32 s{sW}, 2")
    e("s_cbranch_scc0 L_fin")
    e(f"ds_read_b128 v[{R}:{R+3}], v{vT0} offset:{L_F}")
    e(f"ds_read_b128 v[{R+4}:{R+7}], v{vT0} offset:{L_F+16}")
    e("s_waitcnt lgkmcnt(0)")
    pkadd(R, R, R + 4)
    e(f"v_pk_add_f32 v[{R}:{R+1}], v[{R}:{R+1}], v[{R+2}:{R+3}]")
    e(f"v_add_f32 v{R}, v{R}, v{R+1}")
    e(f"v_fma_f32 v{R}, v{vB2}, v{vGg}, v{R}")
    e(f"v_cvt_pk_bf16_f32 v{R}, v{R}, v{R}")
    e("s_mov_b64 exec, 0xffff")
    e(f"buffer_store_short v{R}, v{vOPW}, s[{sC}:{sC+3}], s77 offen")
    e("s_cmp_eq_u32 s2, 0")
    e("s_cbranch_scc0 L_fin1")
    e("s_mov_b64 exec, 1")
    e(f"buffer_store_dword v{vTag}, v{vZ}, s[{sWS}:{sWS+3}], 0 offen")
    lab("L_fin1")
    e("s_mov_b64 exec, -1")

    lab("L_fin")
    if stamps:
        e("s_waitcnt vmcnt(0)")
        stamp(9)
        e("s_waitcnt lgkmcnt(0)")
        for i in range(20): e(f"v_mov_b32 v{32+i}, s{80+i}")
        e(f"s_mul_i32 s66, s2, {NW}")
        e(f"s_add_u32 s66, s66, s{sW}")
        e("s_mul_i32 s66, s66, 80")
        e(f"s_add_u32 s66, s66, {STAMP}")
        e("s_mov_b64 exec, 1")
        for i in range(5):
            e(f"buffer_store_dwordx4 v[{32+4*i}:{35+4*i}], v{vZ}, s[{sWS}:{sWS+3}], s66 offen offset:{16*i}")
    lab("L_end")
    e("s_endpgm")
    lab("L_codeend")
    txt = header(256, NW * 64, LDS_BYTES) + "\n".join(L) + "\n" + footer(156, 100)
    open(out, "w").write(txt)

if __name__ == "__main__":
    gen("k2.s", stamps=False)
    gen("k2s.s", stamps=True)
```

```python
import sys, math, struct
from gen_common import *

def f32(x):
    return "0x%08x" % struct.unpack("<I", struct.pack("<f", x))[0]

STAMP = 0x10000000
L_Q = 0; L_MX = 512; L_LS = L_MX + 64; L_H = 640; L_O = 768; L_G = 832
L_FL = 848
L_QF, L_HF, L_CK, L_C2, L_C3 = L_FL, L_FL + 4, L_FL + 8, L_FL + 12, L_FL + 16
L_F = 896
L_PR = 1536
L_OP = 2048
L_WO = L_OP + 8192
L_K = 28672
L_W2 = L_K
L_V = L_K + 65536
LDS_BYTES = L_V + 65536
assert LDS_BYTES <= 163840
NW = 11
SPIN_MAX = 200000

def gen(out, stamps=False, order="qKwVL", W1=24, W2=40, WSW=None, HASH=0x9E3779B1, QD=(4, 2, 3), HD=(10, 3, 3), OD=(2, 1, 3), FD=(8, 2, 3),
        LP="sc1", SP="sc1", WSB=0, XP="", touch=True, SD=20, abl="", NA=12, HLOC=True, FORCEB=False):
    QP = WSB + 0x10000; HP = WSB + 0x20000; DAB = 0x20000
    OP = WSB + 0x50000; DOB = 0x50000; FP = WSB + 0x100000
    LPL = LP
    L = []
    def e(s): L.append("    " + s)
    def lab(s): L.append(s + ":")
    def stamp(i):
        if stamps: e(f"s_memrealtime s[{80+2*i}:{81+2*i}]")
    def srd(d, b, n):
        e(f"s_mov_b64 s[{d}:{d+1}], s[{b}:{b+1}]"); e(f"s_mov_b32 s{d+2}, {n}"); e(f"s_mov_b32 s{d+3}, 0x20000")
    vLane, vN, vG, vSub, vJ, vTag, vL16, vT0, vT1, vT2, vT3 = 2, 3, 4, 5, 6, 7, 8, 9, 10, 11, 12
    vA0, vA1, vZ = 13, 14, 15
    vL4 = 1; vXid = 0
    SEL = 16; ACC = 24; TMP = 28
    sW, sH, sS, sTag = 3, 35, 36, 34
    sA, sB, sC, sD, sWS = 40, 44, 48, 52, 56
    sTS = 60; sCK = 64
    def tagsetup():
        e(f"s_add_u32 s{sTag}, s{sTag}, 0x01010101")
        e(f"s_cmp_eq_u32 s{sTag}, 0")
        e(f"s_cselect_b32 s{sTag}, 0x01010101, s{sTag}")
        e(f"v_mov_b32 v{vTag}, s{sTag}")
    def tag4(dst, src):
        for k in range(4):
            e(f"v_perm_b32 v{dst+k}, v{src+k}, v{vTag}, s{sTS+k}")
    def check4(src, dst):
        e(f"v_perm_b32 v{dst}, v{src+1}, v{src}, s{sCK}")
        e(f"v_perm_b32 v{dst+1}, v{src+3}, v{src+2}, s{sCK}")
        e(f"v_lshl_or_b32 v{dst}, v{dst+1}, 16, v{dst}")
    def checkN(base, n, t):
        for k in range(n):
            check4(base + 4 * k, t + 2 * k)
        for k in range(n):
            e(f"v_xor_b32 v{t+2*k}, v{t+2*k}, v{vTag}")
        if n == 2: e(f"v_or_b32 v{t}, v{t}, v{t+2}")
        if n >= 3: e(f"v_or3_b32 v{t}, v{t}, v{t+2}, v{t+4}")
        if n == 4: e(f"v_or_b32 v{t}, v{t}, v{t+6}")
        e(f"v_cmp_ne_u32 vcc, 0, v{t}")
    def ppoll(name, nsets, n, base, tmp, issue, delays, first, cnt=79):
        e(f"s_mov_b32 s{cnt}, 0")
        for k in range(nsets):
            if delays[k]: e(f"s_sleep {delays[k]}")
            issue(base + 4 * n * k)
        lab(f"{name}_loop")
        for k in range(nsets):
            e(f"s_waitcnt vmcnt({(nsets-1)*n})")
            checkN(base + 4 * n * k, n, tmp)
            e(f"s_cbranch_vccz {name}_ok{k}")
            issue(base + 4 * n * k)
        e(f"s_add_u32 s{cnt}, s{cnt}, 1")
        e(f"s_cmp_lt_u32 s{cnt}, {SPIN_MAX}")
        e(f"s_cbranch_scc1 {name}_loop")
        e("s_waitcnt vmcnt(0)")
        for k in range(nsets - 1, -1, -1):
            lab(f"{name}_ok{k}")
            first(base + 4 * n * k)
            if k: e(f"s_branch {name}_done")
        lab(f"{name}_done")
    def mpoll_init(regs, msk, base="-1"):
        for k, r in enumerate(regs):
            e(f"v_not_b32 v{r}, v{vTag}")
            e(f"s_mov_b64 s[{msk+2*k}:{msk+2*k+1}], {base}")
    def mpoll_issue(name, regs, msk, issue, base="-1"):
        for k, r in enumerate(regs):
            e(f"s_mov_b64 exec, s[{msk+2*k}:{msk+2*k+1}]")
            e(f"s_cbranch_execz {name}_s{k}")
            issue(k, r)
            lab(f"{name}_s{k}")
        e(f"s_mov_b64 exec, {base}")
    def mpoll_check(regs, msk, tmp, done):
        for k, r in enumerate(regs):
            check4(r, tmp + 2 * k)
        for k, r in enumerate(regs):
            e(f"v_cmp_ne_u32 s[{msk+2*k}:{msk+2*k+1}], v{tmp+2*k}, v{vTag}")
        if len(regs) == 1:
            e(f"s_cmp_eq_u64 s[{msk}:{msk+1}], 0")
            e(f"s_cbranch_scc1 {done}")
        else:
            e(f"s_or_b64 vcc, s[{msk}:{msk+1}], s[{msk+2}:{msk+3}]")
            for k in range(2, len(regs)):
                e(f"s_or_b64 vcc, vcc, s[{msk+2*k}:{msk+2*k+1}]")
            e(f"s_cbranch_scc0 {done}")
    def mpoll(name, regs, msk, tmp, issue, D, base="-1", cnt=79, init=True, precheck=False, switch=None):
        if "nopoll" in abl or ("no" + name) in abl: return
        if init: mpoll_init(regs, msk, base)
        e(f"s_mov_b32 s{cnt}, 0")
        if precheck: mpoll_check(regs, msk, tmp, f"{name}_done")
        if D[0]: e(f"s_sleep {D[0]}")
        lab(f"{name}_loop")
        mpoll_issue(name, regs, msk, issue, base)
        for c in range(D[2]):
            if D[1]: e(f"s_sleep {D[1]}")
            mpoll_check(regs, msk, tmp, f"{name}_done")
        e("s_waitcnt vmcnt(24)")
        e(f"s_add_u32 s{cnt}, s{cnt}, 1")
        if switch:
            e(f"s_cmp_eq_u32 s{cnt}, {NA}")
            e(f"s_cselect_b32 s65, {DAB}, 0")
            for r in switch: e(f"s_add_u32 s{r}, s{r}, s65")
        e(f"s_cmp_lt_u32 s{cnt}, {SPIN_MAX*4}")
        e(f"s_cbranch_scc1 {name}_loop")
        lab(f"{name}_done")
    def ldsspin(name, addr, off, thr, cnt=79, sleep=1, extra=None):
        e(f"s_mov_b32 s{cnt}, 0")
        lab(name)
        e(f"ds_read_b32 v{vT0}, v{addr} offset:{off}")
        if extra: extra()
        e("s_waitcnt lgkmcnt(0)")
        e(f"v_cmp_gt_u32 vcc, {thr}, v{vT0}")
        e(f"s_cbranch_vccz {name}_d")
        if sleep: e(f"s_sleep {sleep}")
        e(f"s_add_u32 s{cnt}, s{cnt}, 1")
        e(f"s_cmp_lt_u32 s{cnt}, {SPIN_MAX*16}")
        e(f"s_cbranch_scc1 {name}")
        lab(name + "_d")
    def selsetup():
        e(f"v_and_b32 v{vT0}, 1, v{vLane}")
        e(f"v_cmp_eq_u32 vcc, 1, v{vT0}")
        e(f"v_mov_b32 v{vT1}, 0x0c0c0100"); e(f"v_mov_b32 v{vT2}, 0x01000c0c")
        e(f"v_cndmask_b32 v{vT1}, v{vT1}, v{vT2}, vcc")
        e(f"v_mov_b32 v{vT2}, 0x0c0c0302"); e(f"v_mov_b32 v{vT3}, 0x03020c0c")
        e(f"v_cndmask_b32 v{vT2}, v{vT2}, v{vT3}, vcc")
        e(f"v_mov_b32 v{vT3}, 0x0c0c0c0c")
        e(f"v_lshrrev_b32 v{vT0}, 1, v{vJ}")
        for w in range(4):
            e(f"v_cmp_eq_u32 vcc, {w}, v{vT0}")
            e(f"s_mov_b32 s{sTS+w}, 0x0706050{w}")
            e("s_nop 0")
            e(f"v_cndmask_b32 v{SEL+w}, v{vT3}, v{vT1}, vcc")
            e(f"v_cndmask_b32 v{SEL+4+w}, v{vT3}, v{vT2}, vcc")
        e(f"s_mov_b32 s{sCK}, 0x0c0c0400")
    def abuild(dst, src, par):
        for w in range(4):
            e(f"v_perm_b32 v{dst+w}, v{src}, v{src}, v{SEL+4*par+w}")
    def mfma(d, a, b, c=None):
        cs = f"v[{d}:{d+3}]" if c is None else c
        e(f"v_mfma_f32_16x16x32_bf16 v[{d}:{d+3}], v[{a}:{a+3}], v[{b}:{b+3}], {cs}")
    DPP = "row_mask:0xf bank_mask:0xf"
    def halfadd_tag_store(soff, voff, dual=False, xid=False, onlyb=False):
        for r in range(4):
            e(f"v_permlane32_swap_b32 v{ACC+r}, v{TMP+r}")
        for r in range(4):
            e(f"v_add_f32_dpp v{ACC+r}, v{TMP+r}, v{ACC+r} row_ror:8 {DPP}")
        tag4(ACC, ACC)
        if xid: e(f"v_bfi_b32 v{ACC+3}, s7, v{vXid}, v{ACC+3}")
        e("s_mov_b64 exec, 0x00ff00ff")
        if dual:
            if not FORCEB: e(f"buffer_store_dwordx4 v[{ACC}:{ACC+3}], v{voff}, s[{sWS}:{sWS+3}], s{soff} offen")
            e(f"s_add_u32 s{soff}, s{soff}, {DAB}")
        e(f"buffer_store_dwordx4 v[{ACC}:{ACC+3}], v{voff}, s[{sWS}:{sWS+3}], s{soff} offen {SP}")
        e("s_mov_b64 exec, -1")
    def xid_setup():
        e("s_getreg_b32 s6, hwreg(HW_REG_XCC_ID)")
        e("s_and_b32 s6, s6, 15")
        e("s_lshl_b32 s6, s6, 8")
        e("s_movk_i32 s7, 0xf00")
        e(f"v_mov_b32 v{vXid}, s6")
    def xrow_op(op, x, t):
        e(f"v_mov_b32 v{t}, v{x}")
        e("s_nop 1")
        e(f"v_permlane16_swap_b32 v{t}, v{x}")
        e(f"{op} v{x}, v{x}, v{t}")
        e(f"v_mov_b32 v{t}, v{x}")
        e("s_nop 1")
        e(f"v_permlane32_swap_b32 v{t}, v{x}")
        e(f"{op} v{x}, v{x}, v{t}")
    def pkadd(d, a, b):
        e(f"v_pk_add_f32 v[{d}:{d+1}], v[{a}:{a+1}], v[{b}:{b+1}]")
        e(f"v_pk_add_f32 v[{d+2}:{d+3}], v[{a+2}:{a+3}], v[{b+2}:{b+3}]")
    def red16(R):
        e("s_nop 1")
        e(f"v_permlane32_swap_b32 v{R}, v{R+2}")
        e(f"v_permlane32_swap_b32 v{R+1}, v{R+3}")
        e(f"v_pk_add_f32 v[{R}:{R+1}], v[{R}:{R+1}], v[{R+2}:{R+3}]")
        e("s_nop 1")
        e(f"v_permlane16_swap_b32 v{R}, v{R+1}")
        e(f"v_add_f32 v{R}, v{R}, v{R+1}")
        for sh in (8, 4):
            e("s_nop 1")
            e(f"v_add_f32_dpp v{R}, v{R}, v{R} row_ror:{sh} {DPP}")
    def hs_setup():
        e(f"s_and_b32 s{sH}, s2, 7")
        e(f"s_lshl_b32 s{sH}, s{sH}, 1")
        e("s_bfe_u32 s65, s2, 0x10003")
        e(f"s_add_u32 s{sH}, s{sH}, s65")
        e(f"s_lshr_b32 s{sS}, s2, 4")
        e("s_and_b32 s4, s2, 7")
        e("s_lshl_b32 s4, s4, 5")
        e("s_lshr_b32 s5, s2, 3")
        e("s_add_u32 s4, s4, s5")
    def lane_setup2():
        e(f"v_and_b32 v{vN}, 15, v{vLane}")
        e(f"v_lshlrev_b32 v{vL16}, 4, v{vLane}")
        e(f"v_lshlrev_b32 v{vL4}, 2, v{vLane}")
        e(f"v_mov_b32 v{vZ}, 0")
    CS = (128 ** -0.5) * math.log2(math.e)

    vm = []
    ops = []
    for p in order:
        if p == "q": ops += [("xq", k) for k in range(3)] + [("q", u) for u in range(18)]
        if p == "w": ops += [("xw", k) for k in range(3)] + [("w", u) for u in range(24)]
        if p == "K": ops += [("K", i) for i in range(64)]
        if p == "V": ops += [("V", i) for i in range(64)]
        if p == "L": ops += [("s", i) for i in range(21)] + [("o", i) for i in range(18)]
    pos = {o: j for j, o in enumerate(ops)}
    PR_K0 = pos[("K", 0)]; PR_V0 = pos[("V", 0)]
    PR_QPUB = pos[("q", 17)] + 1; PR_HPUB = pos[("w", 23)] + 1
    PR_ALL = len(ops)
    lastV = pos[("V", 63)]
    if WSW is None: WSW = lastV - 8

    X = 32; AB = 44; KA = 52; WD = 56; vPR = 152; vW1 = 153; vXW = 154; vHPub = 155; vLast = 156
    lab("L_start")
    stamp(0)
    e("s_load_dwordx16 s[8:23], s[0:1], 0")
    e("s_load_dwordx8 s[24:31], s[0:1], 64")
    e("s_load_dwordx2 s[32:33], s[0:1], 104")
    e("s_cmp_ge_u32 s2, 256")
    e("s_cbranch_scc1 L_end")
    e("v_lshrrev_b32 v1, 6, v0")
    e(f"v_and_b32 v{vLane}, 63, v0")
    e(f"v_readfirstlane_b32 s{sW}, v1")
    e(f"v_lshrrev_b32 v{vG}, 4, v{vLane}")
    e(f"v_bfe_u32 v{vT0}, v{vLane}, 3, 1")
    e(f"v_lshl_add_u32 v{vSub}, v{vT0}, 2, v{vG}")
    e(f"v_and_b32 v{vJ}, 7, v{vLane}")
    lane_setup2()
    hs_setup()
    e(f"s_cmp_eq_u32 s{sW}, 0")
    e("s_cbranch_scc1 L_loader")
    e(f"s_cmp_lg_u32 s{sW}, 1")
    e("s_cbranch_scc1 L_end" if "noothers" in abl else "s_cbranch_scc1 L_kv")
    e("s_getpc_b64 s[72:73]")
    lab("L_pc")
    e(f"v_lshlrev_b32 v{vT0}, 7, v{vLane}")
    e(f"global_load_dword v32, v{vT0}, s[72:73]")
    e(f"v_add_u32 v{vT0}, 8192, v{vT0}")
    e(f"v_min_u32 v{vT0}, L_codeend-L_pc-4, v{vT0}")
    e(f"global_load_dword v33, v{vT0}, s[72:73]")
    e(f"ds_write_b32 v{vL4}, v{vZ} offset:{L_PR}")
    e(f"ds_write_b32 v{vL4}, v{vZ} offset:{L_FL}")
    e("s_branch L_end" if "noothers" in abl else "s_branch L_notw0")
    lab("L_loader")
    e("s_setprio 3")
    e(f"s_lshr_b32 s72, s{sS}, 2")
    e(f"s_and_b32 s73, s{sS}, 3")
    e(f"s_lshl_b32 s74, s{sH}, 2")
    e("s_add_u32 s73, s73, s74")
    e(f"s_mul_i32 s68, s72, {144*8192}")
    e("s_lshl_b32 s74, s73, 7")
    e("s_add_u32 s68, s68, s74")
    e("s_mul_i32 s69, s72, 288")
    e(f"v_mul_u32_u24 v{vA0}, {18*8192}, v{vSub}")
    e(f"v_lshl_add_u32 v{vA0}, v{vJ}, 4, v{vA0}")
    e(f"v_mul_u32_u24 v{vA1}, 36, v{vSub}")
    e(f"s_mov_b32 s{sA+2}, 4718592"); e(f"s_mov_b32 s{sA+3}, 0x20000")
    e(f"s_movk_i32 s{sB+2}, 1152"); e(f"s_mov_b32 s{sB+3}, 0x20000")
    e(f"v_lshlrev_b32 v{vT0}, 2, v{vG}")
    e(f"v_xor_b32 v{vT0}, v{vT0}, v{vN}")
    e(f"v_lshlrev_b32 v{vT0}, 4, v{vT0}")
    e(f"v_lshl_add_u32 v{KA}, v{vG}, 8, v{vT0}")
    for u in range(1, 4): e(f"v_xor_b32 v{KA+u}, {16*u}, v{KA}")
    e(f"s_lshl_b32 s38, s{sH}, 23")
    e(f"s_lshl_b32 s75, s{sS}, 16")
    e("s_add_u32 s38, s38, s75")
    e(f"s_mul_i32 s75, s2, {HASH}")
    e("s_lshr_b32 s75, s75, 28")
    e("s_lshl_b32 s75, s75, 12")
    e("s_add_u32 s38, s38, s75")
    e(f"s_add_u32 s38, s38, {28672*256}")
    e(f"s_mov_b32 s{sC+2}, 134217728"); e(f"s_mov_b32 s{sC+3}, 0x20000")
    e("s_waitcnt lgkmcnt(0)")
    e(f"s_mov_b64 s[{sA}:{sA+1}], s[14:15]")
    e(f"s_mov_b64 s[{sB}:{sB+1}], s[8:9]")
    e(f"s_mov_b64 s[{sC}:{sC+1}], s[10:11]")

    def outbox_init(soff, voff):
        e("s_mov_b64 exec, 0x00ff00ff")
        e(f"buffer_store_dwordx4 v[{TMP}:{TMP+3}], v{voff}, s[{sWS}:{sWS+3}], s{soff} offen")
        e("s_mov_b64 exec, -1")
        vm.append(None)
    def late_setup():
        stamp(1)
        e(f"s_load_dword s{sTag}, s[32:33], {WSB}")
        srd(sWS, 32, 536870912)
        e(f"s_lshl_b32 s70, s{sH}, 12")
        e(f"s_lshl_b32 s74, s{sS}, 8")
        e("s_add_u32 s70, s70, s74")
        e(f"s_add_u32 s70, s70, {QP}")
        e(f"v_lshl_add_u32 v{vA1}, v{vG}, 3, v{vJ}")
        e(f"v_lshlrev_b32 v{vA1}, 4, v{vA1}")
        for r in range(4): e(f"v_mov_b32 v{TMP+r}, 0")
        outbox_init(70, vA1)
        selsetup()
        xid_setup()
    def w1_setup():
        e("s_mov_b32 s72, 0")
        e("s_cmp_ge_u32 s5, 9"); e("s_addc_u32 s72, s72, 0")
        e("s_cmp_ge_u32 s5, 18"); e("s_addc_u32 s72, s72, 0")
        e("s_and_b32 s73, s2, 7")
        e("s_sub_u32 s73, s73, s72")
        e("s_mul_i32 s73, s73, 9")
        e("s_add_u32 s73, s73, s5")
        e(f"s_mul_i32 s66, s72, {192*9216}")
        e("s_lshl_b32 s74, s73, 7")
        e("s_add_u32 s66, s66, s74")
        e("s_mul_i32 s67, s72, 384")
        e("s_mul_i32 s71, s72, 18432")
        e("s_lshl_b32 s74, s73, 8")
        e("s_add_u32 s71, s71, s74")
        e(f"s_add_u32 s71, s71, {HP}")
        e("s_cmp_ge_u32 s2, 216")
        e("s_cselect_b32 s74, 0x70000000, 0")
        e(f"v_mul_u32_u24 v{vW1}, {24*9216}, v{vSub}")
        e(f"v_lshl_add_u32 v{vW1}, v{vJ}, 4, v{vW1}")
        e(f"v_add_u32 v{vW1}, s74, v{vW1}")
        e(f"v_mul_u32_u24 v{vXW}, 48, v{vSub}")
        e(f"v_lshl_add_u32 v{vHPub}, v{vG}, 3, v{vJ}")
        e(f"v_lshl_add_u32 v{vHPub}, v{vHPub}, 4, s74")
        srd(sD, 20, 5308416)
        if HLOC:
            for r in range(4): e(f"v_mov_b32 v{TMP+r}, 0")
            outbox_init(71, vHPub)
    def issue(op):
        t, i = op
        if t == "xq":
            e(f"buffer_load_dwordx4 v[{X+4*i}:{X+4*i+3}], v{vA1}, s[{sB}:{sB+3}], s69 offen offset:{16*i} {XP}")
        elif t == "q":
            e(f"buffer_load_dwordx4 v[{WD+4*i}:{WD+4*i+3}], v{vA0}, s[{sA}:{sA+3}], s68 offen nt")
            if i < 17: e("s_add_u32 s68, s68, 0x2000")
        elif t == "xw":
            e(f"buffer_load_dwordx4 v[{X+4*i}:{X+4*i+3}], v{vXW}, s[{sB}:{sB+3}], s67 offen offset:{16*i} {XP}")
        elif t == "w":
            e(f"buffer_load_dwordx4 v[{WD+4*i}:{WD+4*i+3}], v{vW1}, s[{sD}:{sD+3}], s66 offen nt")
            if i < 23: e("s_add_u32 s66, s66, 0x2400")
        elif t == "K":
            e(f"buffer_load_dwordx4 v{vL16 if 'noswz' in abl else KA+(i&3)}, s[{sC}:{sC+3}], s39 offen offset:{1024*(i&3)} nt lds")
        elif t == "V":
            e(f"buffer_load_dwordx4 v{vL16}, s[{sC}:{sC+3}], s39 offen offset:{1024*(i&3)} nt lds")
        elif t == "s":
            e(f"buffer_load_dwordx4 v{vLast if i == 20 else vL16}, s[{sA}:{sA+3}], s39 offen offset:{1024*(i&3)} nt lds")
        elif t == "o":
            e(f"buffer_load_dwordx4 v{vL16}, s[{sA}:{sA+3}], s39 offen offset:{1024*(i&3)} nt lds")
    def pre_issue(op):
        t, i = op
        if t == "xw" and i == 0: w1_setup()
        if t == "V" and i == 0: e(f"s_mov_b64 s[{sC}:{sC+1}], s[12:13]")
        if t in "KV" and i % 4 == 0:
            e(f"s_xor_b32 s39, s38, {1024*i}")
            e(f"s_mov_b32 m0, {(L_K if t == 'K' else L_V) + 1024*i}")
            return True
        if t == "s" and i == 0:
            srd(sA, 24, 5308416)
            e(f"s_mul_i32 s39, s4, {18*1152}")
            e(f"v_mov_b32 v{vT1}, 0x7fff0000")
            e(f"v_cmp_gt_u32 vcc, 16, v{vLane}")
            e("s_nop 1")
            e(f"v_cndmask_b32 v{vLast}, v{vT1}, v{vL16}, vcc")
            if "noothers" not in abl: ldsspin("L_ck", vZ, L_CK, "8", sleep=1)
        if t == "o" and i == 0:
            srd(sA, 16, 4718592)
            e(f"s_lshl_b32 s39, s{sH}, 4")
            e(f"s_add_u32 s39, s39, s{sS}")
            e(f"s_mul_i32 s39, s39, {16*1152}")
        if t in "so" and i % 4 == 0:
            if i: e("s_add_u32 s39, s39, 4096")
            e(f"s_mov_b32 m0, {(L_W2 if t == 's' else L_WO) + 1024*i}")
            return True
        return False
    def progress(val):
        e(f"v_mov_b32 v{vPR}, {val}")
        e(f"ds_write_b32 v{vL4}, v{vPR} offset:{L_PR}")
    done = [0]
    def process(j):
        t, i = ops[j]
        if t in ("q", "w"):
            NU = 18 if t == "q" else 24
            if "nogemv" not in abl:
                if i == 0:
                    abuild(AB, X, 0)
                if i + 1 < NU: abuild(AB + 4 * ((i + 1) & 1), X + ((i + 1) >> 1), (i + 1) & 1)
                mfma(ACC, AB + 4 * (i & 1), WD + 4 * i, "0" if i == 0 else None)
            if i == NU - 1:
                stamp(2 if t == "q" else 3)
                if t == "q":
                    e("s_waitcnt lgkmcnt(0)")
                    tagsetup()
                    e("s_nop 2")
                else:
                    e("s_nop 7")
                if "nopub" not in abl:
                    dual = t == "q" or HLOC
                    halfadd_tag_store(70 if t == "q" else 71, vA1 if t == "q" else vHPub, dual=dual, xid=(t == "q"))
                    vm.append(None)
                    if dual and not FORCEB: vm.append(None)
                if t == "q": e("s_barrier")
                progress(j + 1)
        elif t == "K":
            if i % 4 == 3: progress(j + 1)
        elif t == "V":
            if i % 4 == 3 or i >= 32: progress(j + 1)
            if i == 63: stamp(4)
    setup_done = False
    for j, op in enumerate(ops):
        Wc = W1 if j < WSW else W2
        needs_gap = pre_issue(op)
        outstanding = len(vm) - done[0]
        newly = []
        if outstanding >= Wc:
            if not setup_done:
                late_setup(); setup_done = True
            e(f"s_waitcnt vmcnt({Wc-1})")
            nd = len(vm) - (Wc - 1)
            newly = vm[done[0]:nd]; done[0] = nd
        elif needs_gap:
            e("s_nop 0")
        if op[0] in ("xw", "w"):
            assert all(x is None or ops[x][0] not in ("q", "xq") for x in vm[done[0]:] + newly), "w1 too close to wq"
        issue(op); vm.append(j)
        for x in newly:
            if x is not None: process(x)
    stamp(5)
    while done[0] < len(vm):
        x = vm[done[0]]
        rest = [y for y in vm[done[0]:] if y is not None and ops[y][0] not in "so"]
        if not rest:
            e("s_waitcnt vmcnt(0)"); done[0] = len(vm); break
        e(f"s_waitcnt vmcnt({len(vm)-done[0]-1})")
        done[0] += 1
        if x is not None: process(x)
    progress(PR_ALL)
    stamp(6)
    if stamps:
        e("s_barrier")
        e("s_branch L_finb4")
    else:
        e("s_endpgm")

    lab("L_notw0")
    e("s_setprio 2")
    e("s_waitcnt lgkmcnt(0)")
    e(f"s_load_dword s{sTag}, s[32:33], {WSB}")
    srd(sWS, 32, 536870912)
    for w in range(4): e(f"s_mov_b32 s{sTS+w}, 0x0706050{w}")
    e(f"s_mov_b32 s{sCK}, 0x0c0c0400")
    G = 56
    e(f"s_lshl_b32 s76, s{sH}, 12")
    e(f"s_add_u32 s76, s76, {QP}")
    e(f"v_lshlrev_b32 v{vT0}, 7, v{vG}")
    e(f"v_lshl_add_u32 v{vT0}, v{vJ}, 4, v{vT0}")
    e(f"v_and_b32 v{vT1}, 8, v{vLane}")
    e(f"v_add_u32 v{vA0}, v{vT0}, v{vT1}")
    vMXA, vG_, vSA, vGA = 16, 17, 19, 20
    vOA = vL16
    e(f"v_lshrrev_b32 v{vT0}, 5, v{vLane}")
    e(f"v_lshlrev_b32 v{vMXA}, 5, v{vT0}")
    e(f"v_and_b32 v{vT2}, 3, v{vLane}")
    e(f"v_lshlrev_b32 v{vT1}, 6, v{vT0}")
    e(f"v_lshl_add_u32 v{vSA}, v{vT2}, 4, v{vT1}")
    e(f"v_lshrrev_b32 v{vT1}, 2, v{vLane}")
    e(f"v_mul_u32_u24 v{vT1}, 1152, v{vT1}")
    e(f"v_lshl_add_u32 v{vGA}, v{vT2}, 4, v{vT1}")
    e(f"s_mul_i32 s75, s{sH}, 18432")
    e(f"s_add_u32 s75, s75, {OP}")
    e(f"s_mul_i32 s77, s{sS}, 1152")
    e("s_add_u32 s77, s77, s75")
    e(f"s_lshl_b32 s78, s{sS}, 6")
    e("s_add_u32 s78, s78, s75")
    e(f"s_lshr_b32 s74, s{sS}, 3")
    e("s_lshl_b32 s74, s74, 6")
    e("s_add_u32 s74, s74, s75")
    e("s_add_u32 s74, s74, 1024")
    e(f"v_lshl_add_u32 v{vA1}, v{vT2}, 2, v{vG}")
    e(f"v_lshlrev_b32 v{vA1}, 1, v{vA1}")
    for r in range(4): e(f"v_mov_b32 v{TMP+r}, 0")
    e(f"buffer_store_dwordx4 v[{TMP}:{TMP+3}], v{vL16}, s[{sWS}:{sWS+3}], s77 offen")
    e("s_mov_b64 exec, 0xff")
    e(f"buffer_store_dwordx4 v[{TMP}:{TMP+3}], v{vL16}, s[{sWS}:{sWS+3}], s77 offen offset:1024")
    e("s_mov_b64 exec, -1")
    xid_setup()
    e("s_waitcnt lgkmcnt(0)")
    tagsetup()
    e("s_barrier")
    stamp(1)
    N = 32
    QR = [96, 100, 104, 108]
    mpoll("L_q", QR, 66, 44, lambda k, r: e(f"buffer_load_dwordx4 v[{r}:{r+3}], v{vL16}, s[{sWS}:{sWS+3}], s76 offen offset:{1024*k} {LPL}"), QD, switch=[76])
    pkadd(N, 96, 100); pkadd(N + 4, 104, 108)
    stamp(3)
    pkadd(N, N, N + 4)
    e(f"v_cvt_pk_bf16_f32 v{N+4}, v{N}, v{N+1}")
    e(f"v_cvt_pk_bf16_f32 v{N+5}, v{N+2}, v{N+3}")
    e(f"v_mov_b32 v{vT0}, 1")
    e(f"ds_write_b64 v{vA0}, v[{N+4}:{N+5}] offset:{L_Q}")
    e("s_mov_b64 exec, 1")
    e(f"ds_write_b32 v{vZ}, v{vT0} offset:{L_QF}")
    e("s_mov_b64 exec, -1")
    ST = 40; FA = 44
    for k in range(4): e(f"v_xor_b32 v{FA+k}, v{QR[k]+3}, v{vXid}")
    e(f"v_or3_b32 v{FA}, v{FA}, v{FA+1}, v{FA+2}")
    e(f"v_or_b32 v{FA}, v{FA}, v{FA+3}")
    e(f"v_and_b32 v{FA}, s7, v{FA}")
    e(f"v_cmp_ne_u32 vcc, 0, v{FA}")
    e("s_cmp_lg_u64 vcc, 0")
    e(f"s_cselect_b32 s38, {DOB}, {DOB if FORCEB else 0}")
    e("s_add_u32 s74, s74, s38")
    e("s_add_u32 s77, s77, s38")
    e("s_add_u32 s78, s78, s38")
    def ostore(name, r, voff, off):
        e("s_cmp_eq_u32 s38, 0")
        e(f"s_cbranch_scc0 {name}_b")
        e(f"buffer_store_dwordx4 v[{r}:{r+3}], v{voff}, s[{sWS}:{sWS+3}], s77 offen offset:{off}")
        e(f"s_branch {name}_d")
        lab(f"{name}_b")
        e(f"buffer_store_dwordx4 v[{r}:{r+3}], v{voff}, s[{sWS}:{sWS+3}], s77 offen offset:{off} {SP}")
        lab(f"{name}_d")
    ldsspin("L_c2", vZ, L_C2, "9", sleep=2)
    e(f"ds_read_b128 v[{FA}:{FA+3}], v{vMXA} offset:{L_MX}")
    e(f"ds_read_b128 v[{FA+4}:{FA+7}], v{vMXA} offset:{L_MX+16}")
    e(f"ds_read_b128 v[{G}:{G+3}], v{vMXA} offset:{L_LS}")
    e(f"ds_read_b128 v[{G+4}:{G+7}], v{vMXA} offset:{L_LS+16}")
    e("s_waitcnt lgkmcnt(0)")
    e(f"v_max3_f32 v{ST}, v{FA}, v{FA+1}, v{FA+2}")
    e(f"v_max3_f32 v{ST+1}, v{FA+3}, v{FA+4}, v{FA+5}")
    e(f"v_max3_f32 v{ST}, v{ST}, v{FA+6}, v{FA+7}")
    e(f"v_max_f32 v{ST}, v{ST}, v{ST+1}")
    e(f"v_perm_b32 v{ST}, v{ST}, v{vTag}, s{sTS}")
    for k in range(8): e(f"v_sub_f32 v{FA+k}, v{FA+k}, v{ST}")
    for k in range(8): e(f"v_exp_f32 v{FA+k}, v{FA+k}")
    e(f"v_mul_f32 v{ST+1}, v{G}, v{FA}")
    for k in range(1, 8): e(f"v_fmac_f32 v{ST+1}, v{G+k}, v{FA+k}")
    e(f"v_perm_b32 v{ST+1}, v{ST+1}, v{vTag}, s{sTS+1}")
    e(f"v_perm_b32 v{ST+2}, v{ST}, v{vTag}, s{sTS+2}")
    e(f"v_perm_b32 v{ST+3}, v{ST}, v{vTag}, s{sTS+3}")
    e("s_mov_b32 exec_lo, 0xf")
    e("s_mov_b32 exec_hi, 0xf")
    ostore("L_ss", ST, vSA, 1024)
    e("s_mov_b64 exec, -1")
    stamp(4)
    def pkf(d, a, f, first):
        fb = f & ~1
        sel = "op_sel:[0,1,0] op_sel_hi:[1,1,1]" if f & 1 else "op_sel:[0,0,0] op_sel_hi:[1,0,1]"
        selm = "op_sel:[0,1] op_sel_hi:[1,1]" if f & 1 else "op_sel:[0,0] op_sel_hi:[1,0]"
        for h in (0, 2):
            if first:
                e(f"v_pk_mul_f32 v[{d+h}:{d+h+1}], v[{a+h}:{a+h+1}], v[{fb}:{fb+1}] {selm}")
            else:
                e(f"v_pk_fma_f32 v[{d+h}:{d+h+1}], v[{a+h}:{a+h+1}], v[{fb}:{fb+1}], v[{d+h}:{d+h+1}] {sel}")
    SR = 112; OR_ = 116
    s_issue = lambda k, r: e(f"buffer_load_dwordx4 v[{r}:{r+3}], v{vGA}, s[{sWS}:{sWS+3}], s74 offen {LPL}")
    mpoll_init([SR], 66)
    mpoll_init([OR_], 68)
    e(f"s_sleep {SD}")
    if "nopoll" not in abl and "noL_st" not in abl: s_issue(0, SR)
    e(f"s_mov_b32 s79, 0")
    lab("L_c3a")
    e(f"ds_read_b32 v{vT0}, v{vZ} offset:{L_C3}")
    e("s_waitcnt lgkmcnt(0)")
    e(f"v_and_b32 v{vT0}, 0xff, v{vT0}")
    e(f"v_cmp_gt_u32 vcc, 6, v{vT0}")
    e("s_cbranch_vccz L_c3a_d")
    e("s_sleep 1")
    e("s_add_u32 s79, s79, 1")
    e(f"s_cmp_lt_u32 s79, {SPIN_MAX*16}")
    e("s_cbranch_scc1 L_c3a")
    lab("L_c3a_d")
    mpoll_check([SR], 66, 64, "L_st_pre")
    if "nopoll" not in abl and "noL_st" not in abl: mpoll_issue("L_st2", [SR], 66, s_issue)
    lab("L_st_pre")
    for k in range(6):
        e(f"ds_read_b128 v[{G+4*k}:{G+4*k+3}], v{vL16} offset:{L_OP+1024*k}")
    e(f"ds_read_b32 v{vG_}, v{vZ} offset:{L_G}")
    e("s_waitcnt lgkmcnt(0)")
    for k in range(6):
        pkf(ACC, G + 4 * k, FA + k, k == 0)
    def c3extra():
        for k in (6, 7):
            e(f"ds_read_b128 v[{G+4*k}:{G+4*k+3}], v{vL16} offset:{L_OP+1024*k}")
    ldsspin("L_c3b", vZ, L_C3, "0x206", sleep=0, extra=c3extra)
    for k in (6, 7):
        pkf(ACC, G + 4 * k, FA + k, False)
    tag4(ACC, ACC)
    ostore("L_os", ACC, vOA, 0)
    stamp(5)
    O2 = 56; l = 61; M = 62
    o_issue = lambda k, r: e(f"buffer_load_dwordx4 v[{r}:{r+3}], v{vGA}, s[{sWS}:{sWS+3}], s78 offen {LPL}")
    mpoll("L_st", [SR], 66, 64, s_issue, (0, 3, 3), init=False, precheck=True)
    e(f"v_max_f32_dpp v{M}, v{SR}, v{SR} row_ror:8 {DPP}")
    e("s_nop 1")
    e(f"v_max_f32_dpp v{M}, v{M}, v{M} row_ror:4 {DPP}")
    xrow_op("v_max_f32", M, vT0)
    e(f"v_sub_f32 v{M}, v{SR}, v{M}")
    e(f"v_exp_f32 v{M}, v{M}")
    e("s_nop 0")
    e(f"v_mul_f32 v{l}, v{SR+1}, v{M}")
    for sh in (8, 4):
        e("s_nop 1")
        e(f"v_add_f32_dpp v{l}, v{l}, v{l} row_ror:{sh} {DPP}")
    xrow_op("v_add_f32", l, vT0)
    e(f"v_rcp_f32 v{l}, v{l}")
    e(f"v_mul_f32 v{M}, v{M}, v{vG_}")
    e(f"v_mul_f32 v{M}, v{M}, v{l}")
    stamp(2)
    mpoll("L_o", [OR_], 68, 64, o_issue, OD, init=False)
    stamp(6)
    e(f"v_pk_mul_f32 v[{O2}:{O2+1}], v[{OR_}:{OR_+1}], v[{M}:{M+1}] op_sel:[0,0] op_sel_hi:[1,0]")
    e(f"v_pk_mul_f32 v[{O2+2}:{O2+3}], v[{OR_+2}:{OR_+3}], v[{M}:{M+1}] op_sel:[0,0] op_sel_hi:[1,0]")
    red16(O2)
    e(f"v_cvt_pk_bf16_f32 v{O2}, v{O2}, v{O2}")
    e("s_mov_b32 exec_lo, 0x000f000f")
    e("s_mov_b32 exec_hi, 0x000f000f")
    e(f"ds_write_b16 v{vA1}, v{O2} offset:{L_O}")
    e("s_mov_b64 exec, -1")
    e("s_waitcnt lgkmcnt(0)")
    e("s_barrier")
    stamp(7)
    e("s_branch L_finb4" if stamps else "s_endpgm")

    lab("L_kv")
    VD = 32; LD = 64; KF = 84; QF = 116; S = 132; KA = 140
    vWO, vW2, vMX2, vHA, vGg, vB2, vOPW, vW2b = 144, 145, 146, 147, 148, 149, 150, 151
    HV = 152; vVA = 156; vOne = 157; vInc = 158; vOut = 159
    sKW = 37
    e(f"s_sub_u32 s{sKW}, s{sW}, 2")
    e(f"s_cmp_eq_u32 s{sW}, 10")
    e("s_cbranch_scc1 L_w10")
    def common_setup():
        e("s_waitcnt lgkmcnt(0)")
        e(f"s_load_dword s{sTag}, s[32:33], {WSB}")
        srd(sWS, 32, 536870912)
        selsetup()
        e(f"v_lshl_add_u32 v{vT0}, v{vG}, 3, v{vJ}")
        e(f"v_lshrrev_b32 v{vT1}, 2, v{vT0}")
        e(f"v_lshlrev_b32 v{vT1}, 14, v{vT1}")
        e(f"v_and_b32 v{vT0}, 3, v{vT0}")
        e(f"v_lshl_add_u32 v{vA0}, v{vT0}, 4, v{vT1}")
        e("s_and_b32 s74, s2, 7")
        e("s_lshl_b32 s74, s74, 5")
        e("s_lshr_b32 s75, s2, 3")
        e("s_add_u32 s74, s74, s75")
        e("s_lshl_b32 s74, s74, 6")
        e(f"s_lshl_b32 s75, s{sKW}, 16")
        e("s_add_u32 s74, s74, s75")
        e(f"s_add_u32 s74, s74, {FP}")
        e(f"s_lshl_b32 s75, s{sKW}, 7")
        e(f"v_lshl_add_u32 v{vT0}, v{vJ}, 4, s75")
        e(f"v_mul_u32_u24 v{vWO}, {2*1152}, v{vSub}")
        e(f"v_add_u32 v{vWO}, v{vWO}, v{vT0}")
        e(f"v_mul_u32_u24 v{vW2}, 1152, v{vSub}")
        e(f"v_add_u32 v{vW2}, v{vW2}, v{vT0}")
        e(f"v_min_u32 v{vT1}, 1, v{vSub}")
        e(f"v_mul_u32_u24 v{vW2b}, 1152, v{vT1}")
        e(f"v_add_u32 v{vW2b}, v{vW2b}, v{vT0}")
        e("s_and_b32 s75, s4, 1")
        e("s_lshl_b32 s75, s75, 3")
        e(f"v_lshl_add_u32 v{vHA}, v{vSub}, 2, s75")
        e(f"v_lshlrev_b32 v{vA1}, 2, v{vSub}")
        srd(sC, 30, 1152)
        srd(sD, 26, 1152)
        e("s_lshr_b32 s75, s2, 2"); e("s_lshl_b32 s75, s75, 7")
        e("s_and_b32 s76, s2, 1"); e("s_lshl_b32 s76, s76, 6"); e("s_add_u32 s75, s75, s76")
        e("s_and_b32 s76, s2, 2"); e("s_lshl_b32 s76, s76, 2"); e("s_add_u32 s77, s75, s76")
        e(f"v_and_b32 v{vT0}, 3, v{vLane}")
        e(f"v_lshlrev_b32 v{vT0}, 4, v{vT0}")
        e(f"v_bfe_u32 v{vT1}, v{vLane}, 2, 2")
        e(f"v_lshl_add_u32 v{vOut}, v{vT1}, 1, v{vT0}")
        e("s_lshl_b32 s76, s2, 14")
        e(f"s_lshl_b32 s75, s{sKW}, 11")
        e("s_add_u32 s76, s76, s75")
        e(f"s_add_u32 s76, s76, {FP}")
        e("s_waitcnt lgkmcnt(0)")
        tagsetup()
    common_setup()
    e("s_cmp_ge_u32 s2, 36")
    e("s_cbranch_scc1 L_nored0")
    e(f"s_cmp_lg_u32 s{sW}, 2")
    e("s_cbranch_scc1 L_nored0")
    e(f"buffer_load_ushort v{vB2}, v{vOut}, s[{sD}:{sD+3}], s77 offen nt")
    e(f"buffer_load_ushort v{vT3}, v{vOut}, s[{sC}:{sC+3}], s77 offen nt")
    lab("L_nored0")
    e(f"s_lshl_b32 s38, s{sKW}, 12")
    e(f"v_and_b32 v{vT0}, 3, v{vN}")
    e(f"v_lshrrev_b32 v{vT1}, 2, v{vN}")
    e(f"v_lshl_add_u32 v{vT0}, v{vT0}, 2, v{vT1}")
    e(f"v_xor_b32 v{vT1}, v{vG}, v{vN}")
    e(f"v_lshlrev_b32 v{vT1}, 4, v{vT1}")
    e(f"v_lshl_add_u32 v{vT0}, v{vT0}, 8, v{vT1}")
    e(f"v_add_u32 v{KA}, s38, v{vT0}")
    for k in range(1, 4): e(f"v_xor_b32 v{KA+k}, {64*k}, v{KA}")
    e(f"s_add_u32 s75, s38, {L_V}")
    e(f"v_add_u32 v{vVA}, s75, v{vL16}")
    e(f"v_lshrrev_b32 v{vT0}, 3, v{vN}")
    e(f"v_lshlrev_b32 v{vT1}, 8, v{vT0}")
    e(f"v_lshl_add_u32 v{vT1}, v{vG}, 4, v{vT1}")
    e(f"s_lshl_b32 s75, s{sKW}, 2")
    e(f"v_lshl_add_u32 v{vMX2}, v{vT0}, 5, s75")
    e(f"v_lshrrev_b32 v{vT0}, 1, v{vG}")
    e(f"v_lshlrev_b32 v{vT0}, 5, v{vT0}")
    e(f"v_lshl_add_u32 v{vT0}, v{vN}, 1, v{vT0}")
    e(f"v_and_b32 v{vT2}, 1, v{vG}")
    e(f"v_add_u32 v{vT0}, v{vT0}, v{vT2}")
    e(f"s_lshl_b32 s66, s{sKW}, 10")
    e(f"v_lshl_add_u32 v{vOPW}, v{vT0}, 4, s66")
    e(f"v_mov_b32 v{vOne}, 1")
    e(f"s_cmp_ge_u32 s{sKW}, 6")
    e("s_cselect_b32 s66, 0x100, 1")
    e(f"v_mov_b32 v{vInc}, s66")
    e(f"s_add_u32 s66, s75, {PR_K0 + 32 + 4}")
    e(f"s_add_u32 s67, s75, {PR_V0 + 4}")
    for r in range(4): e(f"s_add_u32 s{68+r}, s75, {PR_V0 + 32 + r + 1}")
    e("s_barrier")
    ldsspin("L_kw", vL4, L_PR, "s66", sleep=4)
    for t in range(2):
        for k in range(4):
            r = KF + 16 * t + 4 * k
            e(f"ds_read_b128 v[{r}:{r+3}], v{KA+k} offset:{L_K+32768*t}")
    e("s_waitcnt lgkmcnt(0)")
    e("s_mov_b64 exec, 1")
    e(f"ds_add_u32 v{vZ}, v{vOne} offset:{L_CK}")
    e("s_mov_b64 exec, -1")
    stamp(1)
    ldsspin("L_qf", vZ, L_QF, "1", sleep=1)
    stamp(4)
    for k in range(4):
        e(f"ds_read_b128 v[{QF+4*k}:{QF+4*k+3}], v{vT1} offset:{L_Q+64*k}")
    if stamps: e("s_waitcnt lgkmcnt(0)")
    for k in range(4):
        e(f"s_waitcnt lgkmcnt({3-k})")
        for t in range(2):
            mfma(S + 4 * t, KF + 16 * t + 4 * k, QF + 4 * k, "0" if k == 0 else None)
    e(f"v_mov_b32 v{vT2}, {f32(CS)}")
    e("s_nop 6")
    vMx = QF
    e(f"v_max3_f32 v{vMx}, v{S}, v{S+1}, v{S+2}")
    e(f"v_max3_f32 v{vMx+1}, v{S+3}, v{S+4}, v{S+5}")
    e(f"v_max3_f32 v{vMx}, v{vMx}, v{S+6}, v{S+7}")
    e(f"v_max_f32 v{vMx}, v{vMx}, v{vMx+1}")
    xrow_op("v_max_f32", vMx, vMx + 1)
    e(f"v_mul_f32 v{vMx}, v{vT2}, v{vMx}")
    for j in range(8): e(f"v_fma_f32 v{S+j}, v{S+j}, v{vT2}, -v{vMx}")
    for j in range(8): e(f"v_exp_f32 v{S+j}, v{S+j}")
    for j in range(4): e(f"v_cvt_pk_bf16_f32 v{QF+4+j}, v{S+2*j}, v{S+2*j+1}")
    pkadd(S, S, S + 4)
    e(f"v_pk_add_f32 v[{S}:{S+1}], v[{S}:{S+1}], v[{S+2}:{S+3}]")
    e(f"v_add_f32 v{S}, v{S}, v{S+1}")
    xrow_op("v_add_f32", S, S + 1)
    e("s_mov_b64 exec, 0x101")
    e(f"ds_write_b32 v{vMX2}, v{vMx} offset:{L_MX}")
    e(f"ds_write_b32 v{vMX2}, v{S} offset:{L_LS}")
    e("s_mov_b64 exec, 1")
    e(f"ds_add_u32 v{vZ}, v{vOne} offset:{L_C2}")
    e("s_mov_b64 exec, -1")
    for u in range(8):
        abuild(KF + 4 * u, QF + 4 + (u >> 1), u & 1)
    stamp(5)
    def v0extra():
        for r in range(4):
            e(f"ds_read_b128 v[{VD+4*r}:{VD+4*r+3}], v{vVA} offset:{1024*r}")
    ldsspin("L_v0", vL4, L_PR, "s67", sleep=2, extra=v0extra)
    for r in range(4):
        mfma(ACC, KF + 4 * r, VD + 4 * r, "0" if r == 0 else None)
    for r in range(4):
        ldsspin(f"L_v1{r}", vL4, L_PR, f"s{68+r}", sleep=(1 if r == 0 else 0),
                extra=lambda: e(f"ds_read_b128 v[{VD+16+4*r}:{VD+19+4*r}], v{vVA} offset:{32768+1024*r}"))
        mfma(ACC, KF + 16 + 4 * r, VD + 16 + 4 * r)
    e("s_nop 7")
    e(f"ds_write_b128 v{vOPW}, v[{ACC}:{ACC+3}] offset:{L_OP}")
    e("s_mov_b64 exec, 1")
    e(f"ds_add_u32 v{vZ}, v{vInc} offset:{L_C3}")
    e("s_mov_b64 exec, -1")
    stamp(6)
    e("s_waitcnt vmcnt(0)")
    lab("L_tail")
    e(f"v_and_b32 v{vT1}, 3, v{vLane}")
    e(f"v_lshl_add_u32 v{vT1}, v{vG}, 2, v{vT1}")
    e(f"s_lshl_b32 s75, s{sKW}, 2")
    e(f"v_lshl_add_u32 v{vMX2}, v{vT1}, 5, s75")
    e(f"v_lshlrev_b32 v{vVA}, 5, v{vN}")
    def hextra():
        for u in range(3):
            e(f"ds_read_b32 v{HV+u}, v{vHA} offset:{L_H+32*u}")
        e(f"ds_read_b32 v{vGg}, v{vZ} offset:{L_G}")
    ldsspin("L_hf", vZ, L_HF, "1", sleep=1, extra=hextra)
    e(f"v_cmp_gt_u32 vcc, 2, v{vSub}")
    e(f"v_sub_f32 v{vGg}, 1.0, v{vGg}")
    e("s_nop 0")
    e(f"v_cndmask_b32 v{HV+2}, 0, v{HV+2}, vcc")
    for u in range(3): e(f"v_mul_f32 v{HV+u}, v{HV+u}, v{vGg}")
    e(f"v_cvt_pk_bf16_f32 v{HV}, v{HV}, v{HV+1}")
    e(f"v_cvt_pk_bf16_f32 v{HV+1}, v{HV+2}, v{HV+2}")
    abuild(KF, HV, 0); abuild(KF + 4, HV, 1); abuild(KF + 8, HV + 1, 0)
    e(f"s_movk_i32 s66, {PR_ALL}")
    ldsspin("L_flag", vL4, L_PR, "s66", sleep=1)
    e(f"ds_read_b128 v[{LD+8}:{LD+11}], v{vW2} offset:{L_W2}")
    e(f"ds_read_b128 v[{LD+12}:{LD+15}], v{vW2} offset:{L_W2+8*1152}")
    e(f"ds_read_b128 v[{LD+16}:{LD+19}], v{vW2b} offset:{L_W2+16*1152}")
    e(f"ds_read_b128 v[{LD}:{LD+3}], v{vWO} offset:{L_WO}")
    e(f"ds_read_b128 v[{LD+4}:{LD+7}], v{vWO} offset:{L_WO+1152}")
    e("s_waitcnt lgkmcnt(0)")
    for u in range(3):
        mfma(ACC, KF + 4 * u, LD + 8 + 4 * u, "0" if u == 0 else None)
    stamp(7)
    e("s_barrier")
    e(f"ds_read_b32 v{HV}, v{vA1} offset:{L_O}")
    e("s_waitcnt lgkmcnt(0)")
    abuild(KF, HV, 0)
    abuild(KF + 4, HV, 1)
    mfma(ACC, KF, LD)
    e("s_nop 0")
    mfma(ACC, KF + 4, LD + 4)
    e("s_nop 7")
    if "nofpub" not in abl: halfadd_tag_store(74, vA0)
    stamp(8)
    e("s_cmp_ge_u32 s2, 36")
    e("s_cbranch_scc1 L_fin")
    e(f"s_cmp_eq_u32 s{sW}, 10")
    e("s_cbranch_scc1 L_finb4" if stamps else "s_cbranch_scc1 L_fin")
    R = 84
    mpoll("L_f", [32, 36], 66, 88, lambda k, r: e(f"buffer_load_dwordx4 v[{r}:{r+3}], v{vL16}, s[{sWS}:{sWS+3}], s76 offen offset:{1024*k} {LP}"), FD)
    pkadd(R, 32, 36)
    stamp(2)
    e("s_nop 1")
    e(f"v_permlane32_swap_b32 v{R}, v{R+2}")
    e(f"v_permlane32_swap_b32 v{R+1}, v{R+3}")
    e(f"v_pk_add_f32 v[{R}:{R+1}], v[{R}:{R+1}], v[{R+2}:{R+3}]")
    e("s_nop 1")
    e(f"v_permlane16_swap_b32 v{R}, v{R+1}")
    e(f"v_add_f32 v{R}, v{R}, v{R+1}")
    for sh in (8, 4):
        e("s_nop 1")
        e(f"v_add_f32_dpp v{R}, v{R}, v{R} row_ror:{sh} {DPP}")
    e("s_mov_b32 exec_lo, 0x000f000f")
    e("s_mov_b32 exec_hi, 0x000f000f")
    e(f"ds_write_b32 v{vMX2}, v{R} offset:{L_F}")
    e("s_mov_b64 exec, -1")
    e(f"v_lshlrev_b32 v{vB2}, 16, v{vB2}")
    e("s_waitcnt lgkmcnt(0)")
    e("s_barrier")
    e(f"s_cmp_eq_u32 s{sW}, 2")
    e("s_cbranch_scc0 L_fin")
    e(f"ds_read_b128 v[{R}:{R+3}], v{vVA} offset:{L_F}")
    e(f"ds_read_b128 v[{R+4}:{R+7}], v{vVA} offset:{L_F+16}")
    e("s_waitcnt lgkmcnt(0)")
    pkadd(R, R, R + 4)
    e(f"v_pk_add_f32 v[{R}:{R+1}], v[{R}:{R+1}], v[{R+2}:{R+3}]")
    e(f"v_add_f32 v{R}, v{R}, v{R+1}")
    e(f"v_fma_f32 v{R}, v{vB2}, v{vGg}, v{R}")
    e(f"v_cvt_pk_bf16_f32 v{R}, v{R}, v{R}")
    e("s_mov_b64 exec, 0xffff")
    e(f"buffer_store_short v{R}, v{vOut}, s[{sC}:{sC+3}], s77 offen")
    e("s_cmp_eq_u32 s2, 0")
    e("s_cbranch_scc0 L_fin")
    e("s_mov_b64 exec, 1")
    e(f"s_mov_b32 s66, {WSB}")
    e(f"buffer_store_dword v{vTag}, v{vZ}, s[{sWS}:{sWS+3}], s66 offen")
    e("s_branch L_fin")

    lab("L_w10")
    e(f"v_lshlrev_b32 v{vT2}, 5, v{vLane}")
    e("s_waitcnt lgkmcnt(0)")
    B1 = VD + 24
    srd(sA, 8, 1152)
    srd(sB, 28, 1152)
    srd(sC, 22, 9216)
    e(f"buffer_load_dwordx4 v[{VD}:{VD+3}], v{vT2}, s[{sA}:{sA+3}], 0 offen {XP}")
    e(f"buffer_load_dwordx4 v[{VD+4}:{VD+7}], v{vT2}, s[{sA}:{sA+3}], 0 offen offset:16 {XP}")
    e(f"buffer_load_dwordx4 v[{VD+8}:{VD+11}], v{vT2}, s[{sB}:{sB+3}], 0 offen {XP}")
    e(f"buffer_load_dwordx4 v[{VD+12}:{VD+15}], v{vT2}, s[{sB}:{sB+3}], 0 offen offset:16 {XP}")
    e("s_mul_i32 s38, s4, 18")
    e("s_lshr_b32 s38, s38, 2")
    e("s_lshl_b32 s76, s38, 3")
    e(f"v_lshlrev_b32 v{vT0}, 3, v{vLane}")
    e("s_mov_b64 exec, 0x1f")
    e(f"buffer_load_dwordx2 v[{B1}:{B1+1}], v{vT0}, s[{sC}:{sC+3}], s76 offen nt")
    e(f"s_lshl_b32 s66, s{sH}, 23")
    e(f"s_add_u32 s66, s66, {28672*256}")
    e(f"s_lshl_b32 s67, s{sH}, 4")
    e(f"s_add_u32 s67, s67, s{sS}")
    e(f"s_mul_i32 s67, s67, {16*1152}")
    e(f"s_mul_i32 s68, s4, {18*1152}")
    srd(sA, 12, 134217728)
    srd(sB, 16, 4718592)
    srd(sC, 24, 5308416)
    srd(sD, 20, 5308416)
    e(f"v_lshlrev_b32 v{vT0}, 21, v{vLane}")
    e("s_mov_b64 exec, 1")
    e(f"buffer_load_dword v{VD+18}, v{vZ}, s[{sA}:{sA+3}], s66 offen nt")
    e(f"buffer_load_dword v{VD+19}, v{vZ}, s[{sB}:{sB+3}], s67 offen nt")
    e(f"buffer_load_dword v{VD+20}, v{vZ}, s[{sC}:{sC+3}], s68 offen nt")
    e("s_mov_b64 exec, 7")
    e(f"buffer_load_dword v{VD+21}, v{vT0}, s[{sD}:{sD+3}], 0 offen {XP}")
    e("s_mov_b64 exec, -1")
    common_setup()
    e("s_barrier")
    e(f"v_mov_b32 v{vGg}, 0")
    e("s_waitcnt vmcnt(5)")
    for k in range(8):
        e(f"v_dot2_f32_bf16 v{vGg}, v{VD+k}, v{VD+8+k}, v{vGg}")
    e("s_nop 2")
    for sh in (8, 4, 2, 1):
        e(f"v_add_f32_dpp v{vGg}, v{vGg}, v{vGg} row_ror:{sh} {DPP}")
        e("s_nop 1")
    xrow_op("v_add_f32", vGg, vT0)
    e(f"v_mul_f32 v{vGg}, {f32(-math.log2(math.e))}, v{vGg}")
    e(f"v_exp_f32 v{vGg}, v{vGg}")
    e("s_nop 0")
    e(f"v_add_f32 v{vGg}, 1.0, v{vGg}")
    e(f"v_rcp_f32 v{vGg}, v{vGg}")
    e(f"v_mov_b32 v{vT0}, 1")
    e("s_mov_b64 exec, 1")
    e(f"ds_write_b32 v{vZ}, v{vGg} offset:{L_G}")
    e(f"ds_add_u32 v{vZ}, v{vT0} offset:{L_C2}")
    e("s_mov_b64 exec, -1")
    stamp(1)
    HA = VD + 26
    e(f"v_add_u32 v{vT0}, s38, v{vLane}")
    e(f"v_lshrrev_b32 v{vT1}, 4, v{vT0}")
    e(f"v_lshlrev_b32 v{vT1}, 8, v{vT1}")
    e(f"v_and_b32 v{vT2}, 1, v{vT0}")
    e(f"v_lshl_add_u32 v{vT1}, v{vT2}, 7, v{vT1}")
    e(f"v_bfe_u32 v{vT2}, v{vT0}, 1, 3")
    e(f"v_lshl_add_u32 v{HA}, v{vT2}, 4, v{vT1}")
    e(f"s_mov_b32 s66, {HP}")
    e(f"s_mov_b32 s67, {HP+18432}")
    e(f"s_mov_b32 s68, {HP+2*18432}")
    e(f"s_movk_i32 s69, {PR_HPUB}")
    ldsspin("L_hp", vL4, L_PR, "s69", sleep=4)
    e("s_waitcnt vmcnt(0)")
    e("s_mov_b64 exec, 0x1f")
    H = 64
    e(f"v_lshlrev_b32 v{H+12}, 16, v{B1}")
    e(f"v_and_b32 v{H+13}, 0xffff0000, v{B1}")
    e(f"v_lshlrev_b32 v{H+14}, 16, v{B1+1}")
    e(f"v_and_b32 v{H+15}, 0xffff0000, v{B1+1}")
    mpoll("L_h", [96, 100, 104], 40, 32, lambda k, r: e(f"buffer_load_dwordx4 v[{r}:{r+3}], v{HA}, s[{sWS}:{sWS+3}], s{66+k} offen {LPL}"), HD, base="0x1f", switch=([66, 67, 68] if HLOC else None))
    pkadd(H, 96, 100); pkadd(H + 8, 104, H + 12)
    stamp(3)
    pkadd(H, H, H + 8)
    c1 = -2.0 * math.sqrt(2.0 / math.pi) * math.log2(math.e)
    e(f"v_mov_b32 v{H+12}, {f32(c1)}")
    e(f"v_mov_b32 v{H+13}, {f32(c1 * 0.044715)}")
    for r in range(4): e(f"v_mul_f32 v{H+4+r}, v{H+r}, v{H+r}")
    for r in range(4): e(f"v_fma_f32 v{H+4+r}, v{H+4+r}, v{H+13}, v{H+12}")
    for r in range(4): e(f"v_mul_f32 v{H+4+r}, v{H+4+r}, v{H+r}")
    for r in range(4): e(f"v_exp_f32 v{H+4+r}, v{H+4+r}")
    for r in range(4): e(f"v_add_f32 v{H+4+r}, 1.0, v{H+4+r}")
    for r in range(4): e(f"v_rcp_f32 v{H+4+r}, v{H+4+r}")
    for r in range(4): e(f"v_mul_f32 v{H+r}, v{H+r}, v{H+4+r}")
    e(f"v_mov_b32 v{vT0}, 1")
    e(f"ds_write_b128 v{vL16}, v[{H}:{H+3}] offset:{L_H}")
    e("s_mov_b64 exec, 1")
    e(f"ds_write_b32 v{vZ}, v{vT0} offset:{L_HF}")
    e("s_mov_b64 exec, -1")
    e("s_branch L_tail")

    if stamps:
        lab("L_finb4")
        e("s_cmp_ge_u32 s2, 36")
        e("s_cbranch_scc1 L_fin")
        e("s_barrier")
    lab("L_fin")
    if stamps:
        e("s_mov_b64 exec, -1")
        e("s_waitcnt vmcnt(0)")
        stamp(9)
        e("s_waitcnt lgkmcnt(0)")
        for i in range(20): e(f"v_mov_b32 v{32+i}, s{80+i}")
        e(f"s_mul_i32 s66, s2, {NW}")
        e(f"s_add_u32 s66, s66, s{sW}")
        e("s_mul_i32 s66, s66, 80")
        e(f"s_add_u32 s66, s66, {STAMP}")
        e("s_mov_b64 exec, 1")
        for i in range(5):
            e(f"buffer_store_dwordx4 v[{32+4*i}:{35+4*i}], v{vZ}, s[{sWS}:{sWS+3}], s66 offen offset:{16*i}")
    lab("L_end")
    e("s_endpgm")
    lab("L_codeend")
    txt = header(256, NW * 64, LDS_BYTES) + "\n".join(L) + "\n" + footer(160, 100)
    open(out, "w").write(txt)

if __name__ == "__main__":
    import json
    if len(sys.argv) > 1:
        names = []
        for spec in sys.argv[1:]:
            name, kw = spec.split("=", 1)
            kw = eval("dict(%s)" % kw)
            gen(name + "s.s", stamps=True, **kw)
            gen(name + ".s", stamps=False, **kw)
    else:
        gen("k7.s", stamps=False)
        gen("k7s.s", stamps=True)
```

```python
import sys, math, struct
from gen_common import *

def f32(x):
    return "0x%08x" % struct.unpack("<I", struct.pack("<f", x))[0]

STAMP = 0x10000000
L_Q = 0; L_H = 640; L_O = 768; L_G = 832
L_FL = 848
L_QF, L_HF, L_C2, L_PF, L_CF, L_OF = L_FL, L_FL + 4, L_FL + 8, L_FL + 12, L_FL + 16, L_FL + 20
L_F = 1152
L_PR = 1792
L_S = 2048
L_P = 4096
L_WO = 5120
L_W2 = L_WO + 18432
L_K = 45056
LDS_BYTES = L_K + 65536
NW = 11
SPIN_MAX = 200000

def gen(out, stamps=False, order="qKwVL", W1=24, HASH=0x9E3779B1, QD=(25, 0, 0, 1), HD=(50, 0, 0, 1), OD=(0, 2, 3, 3), FD=(8, 2, 3),
        LP="sc1", SP="sc1", WSB=0, XP="", SD=(30, 0, 0, 1), NA=12, FORCEB=False, DBG=None, PT=60, WB=None, WK=None, WV=None, IDLE=True, CQX=0, IL=None, OSTART=63, W2=40, LS=1, FPT=None, FSP=None, abl=""):
    QP = WSB + 0x10000; HP = WSB + 0x20000; DAB = 0x40000
    OP = WSB + 0x80000; DOB = 0x48000; FP = WSB + 0x110000
    L = []
    def e(s):
        if "nostore" in abl and s.startswith("buffer_store_dwordx4") and "s66 offen offset" not in s:
            s = s.replace(" offen", " offen").replace("s[56:59]", "s[96:99]")
        if "nofpub" in abl and s.startswith("buffer_store_dwordx4") and "s74 offen" in s:
            s = s.replace("s[56:59]", "s[96:99]")
        L.append("    " + s)
    def lab(s): L.append(s + ":")
    def stamp(i):
        if stamps and not (abl and i >= 8): e(f"s_memrealtime s[{80+2*i}:{81+2*i}]")
    def srd(d, b, n):
        if d == 56 and abl:
            e(f"s_mov_b64 s[96:97], s[{b}:{b+1}]"); e("s_mov_b32 s98, 0"); e("s_mov_b32 s99, 0x20000")
        e(f"s_mov_b64 s[{d}:{d+1}], s[{b}:{b+1}]"); e(f"s_mov_b32 s{d+2}, {n}"); e(f"s_mov_b32 s{d+3}, 0x20000")
    vXid, vL4, vLane, vN, vG, vSub, vJ, vTag, vL16, vT0, vT1, vT2, vT3, vA0, vA1, vZ = range(16)
    SEL = 16; ACC = 24
    sW, sH, sS, sTag = 3, 35, 36, 34
    sA, sB, sC, sD, sWS = 40, 44, 48, 52, 56
    sTS = 60; sCK = 64
    def tagsetup():
        e(f"s_add_u32 s{sTag}, s{sTag}, 0x01010101")
        e(f"s_cmp_eq_u32 s{sTag}, 0")
        e(f"s_cselect_b32 s{sTag}, 0x01010101, s{sTag}")
        e(f"v_mov_b32 v{vTag}, s{sTag}")
    def tag4(dst, src):
        for k in range(4):
            e(f"v_perm_b32 v{dst+k}, v{src+k}, v{vTag}, s{sTS+k}")
    def check4(src, dst):
        e(f"v_perm_b32 v{dst}, v{src+1}, v{src}, s{sCK}")
        e(f"v_perm_b32 v{dst+1}, v{src+3}, v{src+2}, s{sCK}")
        e(f"v_lshl_or_b32 v{dst}, v{dst+1}, 16, v{dst}")
    def mpoll_init(regs, msk, base="-1"):
        for k, r in enumerate(regs):
            e(f"v_not_b32 v{r}, v{vTag}")
            e(f"s_mov_b64 s[{msk+2*k}:{msk+2*k+1}], {base}")
    def mpoll_issue(name, regs, msk, issue, base="-1"):
        for k, r in enumerate(regs):
            e(f"s_mov_b64 exec, s[{msk+2*k}:{msk+2*k+1}]")
            if len(regs) > 1: e(f"s_cbranch_execz {name}_s{k}")
            issue(k, r)
            if len(regs) > 1: lab(f"{name}_s{k}")
        e(f"s_mov_b64 exec, {base}")
    def mpoll_check(regs, msk, tmp, done):
        for k, r in enumerate(regs):
            check4(r, tmp + 2 * k)
        for k, r in enumerate(regs):
            e(f"v_cmp_ne_u32 s[{msk+2*k}:{msk+2*k+1}], v{tmp+2*k}, v{vTag}")
        if len(regs) == 1:
            e(f"s_cmp_eq_u64 s[{msk}:{msk+1}], 0")
            e(f"s_cbranch_scc1 {done}")
        else:
            e(f"s_or_b64 vcc, s[{msk}:{msk+1}], s[{msk+2}:{msk+3}]")
            for k in range(2, len(regs)):
                e(f"s_or_b64 vcc, vcc, s[{msk+2*k}:{msk+2*k+1}]")
            e(f"s_cbranch_scc0 {done}")
    def mpoll(name, regs, msk, tmp, issue, D, base="-1", cnt=79, init=True, precheck=False, switch=None, limit=SPIN_MAX*4, fail=None):
        if "nopoll" in abl or ("no" + name + ",") in abl: return
        if init: mpoll_init(regs, msk, base)
        e(f"s_mov_b32 s{cnt}, 0")
        if precheck: mpoll_check(regs, msk, tmp, f"{name}_done")
        if D[0]: e(f"s_sleep {D[0]}")
        lab(f"{name}_loop")
        mpoll_issue(name, regs, msk, issue, base)
        for c in range(D[2]):
            if D[1]: e(f"s_sleep {D[1]}")
            mpoll_check(regs, msk, tmp, f"{name}_done")
        if len(D) > 3:
            e(f"s_waitcnt vmcnt({(D[3]-1)*len(regs)})")
            mpoll_check(regs, msk, tmp, f"{name}_done")
        else:
            e("s_waitcnt vmcnt(24)")
        e(f"s_add_u32 s{cnt}, s{cnt}, 1")
        if switch:
            e(f"s_cmp_lt_u32 s{cnt}, {NA}")
            e(f"s_cbranch_scc1 {name}_loop")
            e("s_waitcnt vmcnt(0)")
            mpoll_check(regs, msk, tmp, f"{name}_done")
            for r in switch: e(f"s_xor_b32 s{r}, s{r}, {DAB}")
        e(f"s_cmp_lt_u32 s{cnt}, {limit}")
        e(f"s_cbranch_scc1 {name}_loop")
        if fail: e(f"s_branch {fail}")
        lab(f"{name}_done")
    def ldsspin(name, addr, off, thr, cnt=79, sleep=1, extra=None, hook=None):
        e(f"s_mov_b32 s{cnt}, 0")
        lab(name)
        e(f"ds_read_b32 v{vT0}, v{addr} offset:{off}")
        if extra: extra()
        e("s_waitcnt lgkmcnt(0)")
        e(f"v_cmp_gt_u32 vcc, {thr}, v{vT0}")
        e(f"s_cbranch_vccz {name}_d")
        if sleep: e(f"s_sleep {sleep}")
        e(f"s_add_u32 s{cnt}, s{cnt}, 1")
        if hook: hook()
        e(f"s_cmp_lt_u32 s{cnt}, {SPIN_MAX*16}")
        e(f"s_cbranch_scc1 {name}")
        lab(name + "_d")
    def consts():
        for w in range(4): e(f"s_mov_b32 s{sTS+w}, 0x0706050{w}")
        e(f"s_mov_b32 s{sCK}, 0x0c0c0400")
    def selsetup():
        e(f"v_and_b32 v{vT0}, 1, v{vLane}")
        e(f"v_cmp_eq_u32 vcc, 1, v{vT0}")
        e(f"v_mov_b32 v{vT1}, 0x0c0c0100"); e(f"v_mov_b32 v{vT2}, 0x01000c0c")
        e(f"v_cndmask_b32 v{vT1}, v{vT1}, v{vT2}, vcc")
        e(f"v_mov_b32 v{vT2}, 0x0c0c0302"); e(f"v_mov_b32 v{vT3}, 0x03020c0c")
        e(f"v_cndmask_b32 v{vT2}, v{vT2}, v{vT3}, vcc")
        e(f"v_mov_b32 v{vT3}, 0x0c0c0c0c")
        e(f"v_lshrrev_b32 v{vT0}, 1, v{vJ}")
        for w in range(4):
            e(f"v_cmp_eq_u32 vcc, {w}, v{vT0}")
            e(f"s_mov_b32 s{sTS+w}, 0x0706050{w}")
            e("s_nop 0")
            e(f"v_cndmask_b32 v{SEL+w}, v{vT3}, v{vT1}, vcc")
            e(f"v_cndmask_b32 v{SEL+4+w}, v{vT3}, v{vT2}, vcc")
        e(f"s_mov_b32 s{sCK}, 0x0c0c0400")
    def abuild(dst, src, par):
        for w in range(4):
            e(f"v_perm_b32 v{dst+w}, v{src}, v{src}, v{SEL+4*par+w}")
    def mfma(d, a, b, c=None):
        cs = f"v[{d}:{d+3}]" if c is None else c
        e(f"v_mfma_f32_16x16x32_bf16 v[{d}:{d+3}], v[{a}:{a+3}], v[{b}:{b+3}], {cs}")
    DPP = "row_mask:0xf bank_mask:0xf"
    def halfadd_tag(acc, tmp):
        for r in range(4):
            e(f"v_permlane32_swap_b32 v{acc+r}, v{tmp+r}")
        for r in range(4):
            e(f"v_add_f32_dpp v{acc+r}, v{tmp+r}, v{acc+r} row_ror:8 {DPP}")
        tag4(acc, acc)
    def hstore(acc, soff, voff, pol):
        e("s_mov_b64 exec, 0x00ff00ff")
        e(f"buffer_store_dwordx4 v[{acc}:{acc+3}], v{voff}, s[{sWS}:{sWS+3}], s{soff} offen {pol}")
        e("s_mov_b64 exec, -1")
    def xid_setup():
        e("s_getreg_b32 s6, hwreg(HW_REG_XCC_ID)")
        e("s_and_b32 s6, s6, 15")
        e("s_lshl_b32 s6, s6, 8")
        e("s_movk_i32 s7, 0xf00")
        e(f"v_mov_b32 v{vXid}, s6")
    def xrow_op(op, x, t, only16=False):
        e(f"v_mov_b32 v{t}, v{x}")
        e("s_nop 1")
        e(f"v_permlane16_swap_b32 v{t}, v{x}")
        e(f"{op} v{x}, v{x}, v{t}")
        if only16: return
        e(f"v_mov_b32 v{t}, v{x}")
        e("s_nop 1")
        e(f"v_permlane32_swap_b32 v{t}, v{x}")
        e(f"{op} v{x}, v{x}, v{t}")
    def pkadd(d, a, b):
        e(f"v_pk_add_f32 v[{d}:{d+1}], v[{a}:{a+1}], v[{b}:{b+1}]")
        e(f"v_pk_add_f32 v[{d+2}:{d+3}], v[{a+2}:{a+3}], v[{b+2}:{b+3}]")
    def red16(R):
        e("s_nop 1")
        e(f"v_permlane32_swap_b32 v{R}, v{R+2}")
        e(f"v_permlane32_swap_b32 v{R+1}, v{R+3}")
        e(f"v_pk_add_f32 v[{R}:{R+1}], v[{R}:{R+1}], v[{R+2}:{R+3}]")
        e("s_nop 1")
        e(f"v_permlane16_swap_b32 v{R}, v{R+1}")
        e(f"v_add_f32 v{R}, v{R}, v{R+1}")
        for sh in (8, 4):
            e("s_nop 1")
            e(f"v_add_f32_dpp v{R}, v{R}, v{R} row_ror:{sh} {DPP}")
    def flagset(off, vreg):
        e("s_mov_b64 exec, 1")
        e(f"ds_write_b32 v{vZ}, v{vreg} offset:{off}")
        e("s_mov_b64 exec, -1")
    CS = (128 ** -0.5) * math.log2(math.e)

    vm = []
    ops = []
    for p in order:
        if p == "q": ops += [("xq", k) for k in range(3)] + [("q", u) for u in range(18)]
        if p == "w": ops += [("xw", k) for k in range(3)] + [("w", u) for u in range(24)]
        if p == "K": ops += [("K", i) for i in range(64)]
        if p == "V": ops += [("V", i) for i in range(64)]
        if p == "L": ops += [("s", i) for i in range(21)] + [("o", i) for i in range(18)]
    if IL:
        qs = [o for o in ops if o[0] == "q"]; ks = [o for o in ops if o[0] == "K"]
        rest = [o for o in ops if o[0] not in ("xq", "q", "K")]
        mix = []
        while qs:
            mix += qs[:IL[0]]; qs = qs[IL[0]:]
            mix += ks[:IL[1]]; ks = ks[IL[1]:]
        assert len(ks) >= 32
        ops = [o for o in ops if o[0] == "xq"] + mix + ks + rest
    pos = {o: j for j, o in enumerate(ops)}
    PR_K0 = pos[("K", 32)] - 32; PR_V0 = pos[("V", 0)]
    PR_HPUB = pos[("w", 23)] + 1
    PR_W2 = pos[("s", 20)] + 1
    PR_ALL = len(ops)
    assert pos[("w", 0)] < PR_V0

    ACCQ = 28; ACCH = 32; X = 36; AB = 52; KA = 60; vPR = 64; vW1 = 65; vXW = 66; vHPub = 67; vLast = 68; vPA = 69
    RING = 72; NR = 24
    lab("L_start")
    stamp(0)
    e("s_load_dwordx16 s[8:23], s[0:1], 0")
    e("s_load_dwordx8 s[24:31], s[0:1], 64")
    e("s_load_dwordx2 s[32:33], s[0:1], 104")
    e("s_cmp_ge_u32 s2, 256")
    e("s_cbranch_scc1 L_end")
    e("v_lshrrev_b32 v1, 6, v0")
    e(f"v_and_b32 v{vLane}, 63, v0")
    e(f"v_readfirstlane_b32 s{sW}, v1")
    e(f"v_lshrrev_b32 v{vG}, 4, v{vLane}")
    e(f"v_bfe_u32 v{vT0}, v{vLane}, 3, 1")
    e(f"v_lshl_add_u32 v{vSub}, v{vT0}, 2, v{vG}")
    e(f"v_and_b32 v{vJ}, 7, v{vLane}")
    e(f"v_and_b32 v{vN}, 15, v{vLane}")
    e(f"v_lshlrev_b32 v{vL16}, 4, v{vLane}")
    e(f"v_lshlrev_b32 v{vL4}, 2, v{vLane}")
    e(f"v_mov_b32 v{vZ}, 0")
    e("s_and_b32 s4, s2, 7")
    e(f"s_lshl_b32 s{sH}, s4, 1")
    e("s_bfe_u32 s65, s2, 0x10003")
    e(f"s_add_u32 s{sH}, s{sH}, s65")
    e(f"s_lshr_b32 s{sS}, s2, 4")
    e("s_lshl_b32 s4, s4, 5")
    e("s_lshr_b32 s5, s2, 3")
    e("s_add_u32 s4, s4, s5")
    e(f"s_cmp_eq_u32 s{sW}, 0")
    e("s_cbranch_scc1 L_loader")
    e(f"s_cmp_lg_u32 s{sW}, 1")
    e("s_cbranch_scc1 L_kv")
    e("s_getpc_b64 s[72:73]")
    lab("L_pc")
    e(f"v_lshlrev_b32 v{vT0}, 7, v{vLane}")
    e(f"global_load_dword v32, v{vT0}, s[72:73]")
    e(f"v_add_u32 v{vT0}, 8192, v{vT0}")
    e(f"v_min_u32 v{vT0}, L_codeend-L_pc-4, v{vT0}")
    e(f"global_load_dword v33, v{vT0}, s[72:73]")
    e(f"ds_write_b32 v{vL4}, v{vZ} offset:{L_PR}")
    e(f"ds_write_b32 v{vL4}, v{vZ} offset:{L_FL}")
    e("s_branch L_pwave")
    lab("L_loader")
    e("s_setprio 3")
    e(f"s_lshr_b32 s72, s{sS}, 2")
    e(f"s_and_b32 s73, s{sS}, 3")
    if CQX: e(f"s_xor_b32 s73, s73, {CQX}")
    e(f"s_lshl_b32 s74, s{sH}, 2")
    e("s_add_u32 s73, s73, s74")
    e(f"s_mul_i32 s68, s72, {144*8192}")
    e("s_lshl_b32 s74, s73, 7")
    e("s_add_u32 s68, s68, s74")
    e("s_mul_i32 s69, s72, 288")
    e(f"v_mul_u32_u24 v{vA0}, {18*8192}, v{vSub}")
    e(f"v_lshl_add_u32 v{vA0}, v{vJ}, 4, v{vA0}")
    e(f"v_mul_u32_u24 v{vA1}, 36, v{vSub}")
    e(f"s_mov_b32 s{sA+2}, 4718592"); e(f"s_mov_b32 s{sA+3}, 0x20000")
    e(f"s_movk_i32 s{sB+2}, 1152"); e(f"s_mov_b32 s{sB+3}, 0x20000")
    e(f"v_lshlrev_b32 v{vT0}, 2, v{vG}")
    e(f"v_xor_b32 v{vT0}, v{vT0}, v{vN}")
    e(f"v_lshlrev_b32 v{vT0}, 4, v{vT0}")
    e(f"v_lshl_add_u32 v{KA}, v{vG}, 8, v{vT0}")
    for u in range(1, 4): e(f"v_xor_b32 v{KA+u}, {16*u}, v{KA}")
    e(f"s_lshl_b32 s38, s{sH}, 23")
    e(f"s_lshl_b32 s75, s{sS}, 16")
    e("s_add_u32 s38, s38, s75")
    e(f"s_mul_i32 s75, s2, {HASH}")
    e("s_lshr_b32 s75, s75, 28")
    e("s_lshl_b32 s75, s75, 12")
    e("s_add_u32 s38, s38, s75")
    e(f"s_add_u32 s38, s38, {28672*256}")
    e(f"s_mov_b32 s{sC+2}, 134217728"); e(f"s_mov_b32 s{sC+3}, 0x20000")
    e("s_waitcnt lgkmcnt(0)")
    e(f"s_mov_b64 s[{sA}:{sA+1}], s[14:15]")
    e(f"s_mov_b64 s[{sB}:{sB+1}], s[8:9]")
    e(f"s_mov_b64 s[{sC}:{sC+1}], s[10:11]")

    def late_setup():
        stamp(1)
        e(f"s_load_dword s{sTag}, s[32:33], {WSB}")
        srd(sWS, 32, 536870912)
        e(f"s_lshl_b32 s70, s{sH}, 12")
        e(f"s_lshl_b32 s74, s{sS}, 8")
        if CQX: e(f"s_xor_b32 s74, s74, {CQX*256}")
        e("s_add_u32 s70, s70, s74")
        e(f"s_add_u32 s70, s70, {QP}")
        e(f"v_lshl_add_u32 v{vA1}, v{vG}, 3, v{vJ}")
        e(f"v_lshlrev_b32 v{vA1}, 4, v{vA1}")
        for r in range(4): e(f"v_mov_b32 v{ACC+r}, 0")
        hstore(ACC, 70, vA1, ""); vm.append(None)
        selsetup()
        xid_setup()
        e("s_mov_b32 s78, 0")
    def w1_setup():
        if IDLE:
            e("s_add_u32 s74, s5, 1")
            e("s_lshr_b32 s74, s74, 3")
            e("s_sub_u32 s75, s5, s74")
            e("s_and_b32 s74, s5, 7")
            e("s_cmp_eq_u32 s74, 6")
            e("s_cselect_b32 s75, 27, s75")
        else:
            e("s_mov_b32 s75, s5")
        e("s_mov_b32 s72, 0")
        e("s_cmp_ge_u32 s75, 9"); e("s_addc_u32 s72, s72, 0")
        e("s_cmp_ge_u32 s75, 18"); e("s_addc_u32 s72, s72, 0")
        e("s_and_b32 s73, s2, 7")
        e("s_sub_u32 s73, s73, s72")
        e("s_mul_i32 s73, s73, 9")
        e("s_add_u32 s73, s73, s75")
        e(f"s_mul_i32 s66, s72, {192*9216}")
        e("s_lshl_b32 s74, s73, 7")
        e("s_add_u32 s66, s66, s74")
        e("s_mul_i32 s67, s72, 384")
        e("s_mul_i32 s71, s72, 18432")
        e("s_lshl_b32 s74, s73, 8")
        e("s_add_u32 s71, s71, s74")
        e(f"s_add_u32 s71, s71, {HP}")
        e("s_cmp_ge_u32 s75, 27")
        e("s_cselect_b32 s74, 0x70000000, 0")
        e(f"v_mul_u32_u24 v{vW1}, {24*9216}, v{vSub}")
        e(f"v_lshl_add_u32 v{vW1}, v{vJ}, 4, v{vW1}")
        e(f"v_add_u32 v{vW1}, s74, v{vW1}")
        e(f"v_mul_u32_u24 v{vXW}, 48, v{vSub}")
        e(f"v_add_u32 v{vHPub}, s74, v{vA1}")
        srd(sD, 20, 5308416)
        hstore(ACC, 71, vHPub, ""); vm.append(None)
        e(f"s_mul_i32 s76, s{sH}, 18432")
        e(f"s_mul_i32 s77, s{sS}, 1152")
        e("s_add_u32 s77, s77, s76")
        e(f"s_add_u32 s77, s77, {OP}")
        e(f"buffer_store_dwordx4 v[{ACC}:{ACC+3}], v{vL16}, s[{sWS}:{sWS+3}], s77 offen"); vm.append(None)
        e(f"v_lshlrev_b32 v{vPA}, 7, v{vSub}")
    def send_b(name):
        e("s_cmp_lg_u32 s78, 0")
        e(f"s_cbranch_scc1 {name}")
        e("s_mov_b32 s78, 1")
        e(f"s_add_u32 s70, s70, {DAB}")
        e(f"s_add_u32 s71, s71, {DAB}")
        hstore(ACCQ, 70, vA1, SP)
        hstore(ACCH, 71, vHPub, SP)
        lab(name)
    slot_of = {}
    ringn = [0]
    processed = set()
    def issue(j):
        t, i = ops[j]
        if t in ("q", "w", "V"):
            sl = ringn[0] % NR
            prev = [k for k, v in slot_of.items() if v == sl]
            assert all(k in processed for k in prev), ("ring overrun", j)
            slot_of[j] = sl; ringn[0] += 1
            r = RING + 4 * sl
        if t == "xq":
            e(f"buffer_load_dwordx4 v[{X+4*i}:{X+4*i+3}], v{vA1}, s[{sB}:{sB+3}], s69 offen offset:{16*i} {XP}")
        elif t == "q":
            e(f"buffer_load_dwordx4 v[{r}:{r+3}], v{vA0}, s[{sA}:{sA+3}], s68 offen nt")
            if i < 17: e("s_add_u32 s68, s68, 0x2000")
        elif t == "xw":
            assert pos[("q", 17)] in processed
            e(f"buffer_load_dwordx4 v[{X+4*i}:{X+4*i+3}], v{vXW}, s[{sB}:{sB+3}], s67 offen offset:{16*i} {XP}")
        elif t == "w":
            e(f"buffer_load_dwordx4 v[{r}:{r+3}], v{vW1}, s[{sD}:{sD+3}], s66 offen nt")
            if i < 23: e("s_add_u32 s66, s66, 0x2400")
        elif t == "K":
            e(f"buffer_load_dwordx4 v{KA+(i&3)}, s[{sC}:{sC+3}], s39 offen offset:{1024*(i&3)} nt lds")
        elif t == "V":
            e(f"buffer_load_dwordx4 v[{r}:{r+3}], v{vL16}, s[{sC}:{sC+3}], s39 offen offset:{1024*(i&3)} nt")
        elif t == "s":
            e(f"buffer_load_dwordx4 v{vLast if i == 20 else vL16}, s[{sA}:{sA+3}], s39 offen offset:{1024*(i&3)} nt lds")
        elif t == "o":
            e(f"buffer_load_dwordx4 v{vL16}, s[{sA}:{sA+3}], s39 offen offset:{1024*(i&3)} nt lds")
    def pre_issue(op):
        t, i = op
        if t == "xw" and i == 0: w1_setup()
        if t == "V" and i == 0: e(f"s_mov_b64 s[{sC}:{sC+1}], s[12:13]")
        if t in "KV" and i % 4 == 0:
            e(f"s_xor_b32 s39, s38, {1024*i}")
            if t == "K":
                e(f"s_mov_b32 m0, {L_K + 1024*i}")
                return True
        if t == "s" and i == 0:
            srd(sA, 24, 5308416)
            e(f"s_mul_i32 s39, s4, {18*1152}")
            e(f"v_mov_b32 v{vT1}, 0x7fff0000")
            e(f"v_cmp_gt_u32 vcc, 16, v{vLane}")
            e("s_nop 1")
            e(f"v_cndmask_b32 v{vLast}, v{vT1}, v{vL16}, vcc")
        if t == "o" and i == 0:
            srd(sA, 16, 4718592)
            e(f"s_lshl_b32 s39, s{sH}, 4")
            e(f"s_add_u32 s39, s39, s{sS}")
            e(f"s_mul_i32 s39, s39, {16*1152}")
        if t in "so" and i % 4 == 0:
            if i: e("s_add_u32 s39, s39, 4096")
            e(f"s_mov_b32 m0, {(L_W2 if t == 's' else L_WO) + 1024*i}")
            return True
        return False
    def progress(val):
        e(f"v_mov_b32 v{vPR}, {val}")
        e(f"ds_write_b32 v{vL4}, v{vPR} offset:{L_PR}")
    done = [0]
    def pread(qt):
        b = X + 8 * (qt & 1)
        e(f"ds_read_b128 v[{b}:{b+3}], v{vPA} offset:{L_P+32*qt}")
        e(f"ds_read_b128 v[{b+4}:{b+7}], v{vPA} offset:{L_P+32*qt+16}")
    def psrc(u): return X + 8 * ((u >> 4) & 1) + ((u & 15) >> 1)
    def process_a(j):
        t, i = ops[j]
        if t in ("q", "w"):
            acc = ACCQ if t == "q" else ACCH
            if i == 0:
                abuild(AB, X, 0); e("s_nop 1")
            mfma(acc, AB + 4 * (i & 1), RING + 4 * slot_of[j], "0" if i == 0 else None)
        elif t == "V":
            if i == 0:
                def hook():
                    e(f"s_cmp_lg_u32 s79, {PT}")
                    e("s_cbranch_scc1 L_pf_nb")
                    send_b("L_pf_nb")
                ldsspin("L_pf", vZ, L_PF, "1", sleep=1, extra=lambda: (pread(0), pread(1)), hook=hook)
                stamp(7)
                e(f"v_readfirstlane_b32 s76, v{vT0}")
                abuild(AB, psrc(0), 0); e("s_nop 1")
            mfma(ACC, AB + 4 * (i & 1), RING + 4 * slot_of[j], "0" if i == 0 else None)
        processed.add(j)
    def process_b(j):
        t, i = ops[j]
        if t in ("q", "w"):
            NU = 18 if t == "q" else 24
            acc = ACCQ if t == "q" else ACCH
            if i + 1 < NU:
                abuild(AB + 4 * ((i + 1) & 1), X + ((i + 1) >> 1), (i + 1) & 1); e("s_nop 0")
            if i == NU - 1:
                stamp(2 if t == "q" else 3)
                if t == "q":
                    e("s_waitcnt lgkmcnt(0)")
                    tagsetup()
                    e("s_nop 2")
                else:
                    e("s_nop 7")
                halfadd_tag(acc, AB)
                if t == "q": e(f"v_bfi_b32 v{acc+3}, s7, v{vXid}, v{acc+3}")
                if not FORCEB:
                    hstore(acc, 70 if t == "q" else 71, vA1 if t == "q" else vHPub, ""); vm.append(None)
                if t == "q": e("s_barrier")
                else: progress(j + 1)
        elif t == "K":
            if i % 4 == 3 and i >= 32: progress(j + 1)
        elif t == "V":
            if i + 1 < 64:
                if (i + 1) % 16 == 0: e("s_waitcnt lgkmcnt(0)")
                abuild(AB + 4 * ((i + 1) & 1), psrc(i + 1), (i + 1) & 1); e("s_nop 0")
                if (i + 1) % 16 == 0 and (i + 1) // 16 + 1 < 4: pread((i + 1) // 16 + 1)
            if i == 1:
                e("s_cmp_eq_u32 s76, 1")
                e(f"s_cselect_b32 s65, 0, {DOB}")
                e("s_add_u32 s77, s77, s65")
            if i == OSTART: progress(j + 1)
            if i == 63:
                stamp(4)
                e("s_cmp_eq_u32 s76, 1")
                e("s_nop 6")
                tag4(ACC, ACC)
                e("s_cbranch_scc0 L_os_b")
                e(f"buffer_store_dwordx4 v[{ACC}:{ACC+3}], v{vL16}, s[{sWS}:{sWS+3}], s77 offen")
                e("s_branch L_os_d")
                lab("L_os_b")
                e(f"buffer_store_dwordx4 v[{ACC}:{ACC+3}], v{vL16}, s[{sWS}:{sWS+3}], s77 offen {SP}")
                lab("L_os_d")
                vm.append(None)
        elif t == "s":
            if i == 20: progress(j + 1)
    setup_done = False
    for j, op in enumerate(ops):
        Wc = W1 if (W2 is None or op[0] not in "so") else W2
        if WK and op[0] == "K": Wc = WK
        if WV and op[0] == "V": Wc = WV
        if WB and pos[("V", 63)] in processed: Wc = WB
        needs_gap = pre_issue(op)
        newly = []
        if len(vm) - done[0] >= Wc:
            if not setup_done:
                late_setup(); setup_done = True
            e(f"s_waitcnt vmcnt({Wc-1})")
            nd = len(vm) - (Wc - 1)
            newly = [x for x in vm[done[0]:nd] if x is not None]; done[0] = nd
        elif needs_gap:
            e("s_nop 0")
        for x in newly[:-1]:
            process_a(x); process_b(x)
            if ops[x][0] in "qwV": e("s_nop 0")
        if newly:
            last = newly[-1]
            urgent = ops[last] in (("V", 63), ("q", 17))
            process_a(last)
            if urgent: process_b(last)
        issue(j); vm.append(j)
        if newly and not urgent: process_b(last)
    stamp(5)
    while done[0] < len(vm):
        x = vm[done[0]]
        rest = [y for y in vm[done[0]:] if y is not None and (ops[y][0] not in "so" or ops[y] == ("s", 20))]
        if not rest:
            e("s_waitcnt vmcnt(0)"); done[0] = len(vm); break
        k = vm.index(rest[0])
        e(f"s_waitcnt vmcnt({len(vm)-k-1})")
        done[0] = k + 1
        e("s_nop 0")
        process_a(rest[0]); process_b(rest[0])
    progress(PR_ALL)
    stamp(6)
    e(f"ds_read_b32 v{vT0}, v{vZ} offset:{L_CF}")
    e("s_waitcnt lgkmcnt(0)")
    e(f"v_cmp_ne_u32 vcc, 1, v{vT0}")
    e("s_cbranch_vccz L_ld_end")
    send_b("L_ld_end")
    e("s_branch L_finb4" if stamps else "s_endpgm")

    lab("L_pwave")
    e("s_setprio 2")
    e("s_waitcnt lgkmcnt(0)")
    e(f"s_load_dword s{sTag}, s[32:33], {WSB}")
    srd(sWS, 32, 536870912)
    consts()
    e(f"s_lshl_b32 s76, s{sH}, 12")
    e(f"s_add_u32 s76, s76, {QP}")
    e("s_xor_b32 s39, s76, 0x1000")
    e(f"v_lshlrev_b32 v{vT0}, 7, v{vG}")
    e(f"v_lshl_add_u32 v{vT0}, v{vJ}, 4, v{vT0}")
    e(f"v_and_b32 v{vT1}, 8, v{vLane}")
    e(f"v_add_u32 v{vA0}, v{vT0}, v{vT1}")
    vG_, vSA, vGA, vGS, vL32, vL256 = 17, 19, 20, 21, 22, 23
    e(f"v_lshrrev_b32 v{vT0}, 5, v{vLane}")
    e(f"v_and_b32 v{vT2}, 3, v{vLane}")
    e(f"v_lshlrev_b32 v{vT1}, 6, v{vT0}")
    e(f"v_lshl_add_u32 v{vSA}, v{vT2}, 4, v{vT1}")
    e(f"v_lshrrev_b32 v{vT1}, 2, v{vLane}")
    e(f"v_mul_u32_u24 v{vT1}, 1152, v{vT1}")
    e(f"v_lshl_add_u32 v{vGS}, v{vT2}, 4, v{vT1}")
    e(f"v_and_b32 v{vT3}, 1, v{vLane}")
    e(f"v_lshl_add_u32 v{vGA}, v{vT3}, 4, v{vT1}")
    e(f"v_bfe_u32 v{vT0}, v{vLane}, 1, 1")
    e(f"v_lshl_add_u32 v{vGA}, v{vT0}, 8, v{vGA}")
    e(f"v_lshl_add_u32 v{vA1}, v{vT0}, 2, v{vG}")
    e(f"v_lshl_add_u32 v{vA1}, v{vT3}, 3, v{vA1}")
    e(f"v_lshlrev_b32 v{vA1}, 1, v{vA1}")
    e(f"v_lshlrev_b32 v{vL32}, 5, v{vLane}")
    e(f"v_lshlrev_b32 v{vL256}, 8, v{vLane}")
    e(f"s_mul_i32 s75, s{sH}, 18432")
    e(f"s_add_u32 s75, s75, {OP}")
    e(f"s_mul_i32 s77, s{sS}, 1152")
    e("s_add_u32 s77, s77, s75")
    e(f"s_lshr_b32 s74, s{sS}, 3")
    e("s_lshl_b32 s78, s74, 9")
    e(f"s_and_b32 s65, s{sS}, 7")
    e("s_lshl_b32 s65, s65, 5")
    e("s_add_u32 s78, s78, s65")
    e("s_add_u32 s78, s78, s75")
    e("s_lshl_b32 s74, s74, 6")
    e("s_add_u32 s74, s74, s75")
    e("s_add_u32 s74, s74, 1024")
    for r in range(4): e(f"v_mov_b32 v{ACC+r}, 0")
    e("s_mov_b64 exec, 0xff")
    e(f"buffer_store_dwordx4 v[{ACC}:{ACC+3}], v{vL16}, s[{sWS}:{sWS+3}], s77 offen offset:1024")
    e("s_mov_b64 exec, -1")
    xid_setup()
    e("s_waitcnt lgkmcnt(0)")
    tagsetup()
    e("s_barrier")
    stamp(1)
    N = 32
    QR = [96, 100, 104, 108]
    mpoll("L_q", QR, 66, 44, lambda k, r: e(f"buffer_load_dwordx4 v[{r}:{r+3}], v{vL16}, s[{sWS}:{sWS+3}], s76 offen offset:{1024*k} {LP}"), QD, switch=[76])
    pkadd(N, 96, 100); pkadd(N + 4, 104, 108)
    stamp(3)
    pkadd(N, N, N + 4)
    e(f"v_cvt_pk_bf16_f32 v{N+4}, v{N}, v{N+1}")
    e(f"v_cvt_pk_bf16_f32 v{N+5}, v{N+2}, v{N+3}")
    e(f"v_mov_b32 v{vT1}, 1")
    e(f"ds_write_b64 v{vA0}, v[{N+4}:{N+5}] offset:{L_Q}")
    flagset(L_QF, vT1)
    SB = 120
    e(f"v_not_b32 v{SB}, v{vTag}")
    e("s_mov_b64 exec, 0xffff")
    e(f"buffer_load_dwordx4 v[{SB}:{SB+3}], v{vL256}, s[{sWS}:{sWS+3}], s39 offen {LP}")
    e("s_mov_b64 exec, -1")
    ST = 40; FA = 44
    for k in range(4): e(f"v_xor_b32 v{FA+k}, v{QR[k]+3}, v{vXid}")
    e(f"v_or3_b32 v{FA}, v{FA}, v{FA+1}, v{FA+2}")
    e(f"v_or_b32 v{FA}, v{FA}, v{FA+3}")
    e(f"v_and_b32 v{FA}, s7, v{FA}")
    e(f"v_cmp_ne_u32 vcc, 0, v{FA}")
    e("s_cmp_lg_u64 vcc, 0" if not abl else "s_cmp_lg_u32 0, 0")
    e(f"s_cselect_b32 s38, {DOB}, {DOB if FORCEB else 0}")
    e(f"s_cselect_b32 s37, 2, {2 if FORCEB else 1}")
    e("s_add_u32 s74, s74, s38")
    e("s_add_u32 s77, s77, s38")
    e("s_add_u32 s78, s78, s38")
    e(f"v_mov_b32 v{vT2}, s37")
    e(f"v_mov_b32 v{vT3}, {f32(CS)}")
    S = 48
    def sextra():
        e(f"ds_read_b128 v[{S}:{S+3}], v{vL32} offset:{L_S}")
        e(f"ds_read_b128 v[{S+4}:{S+7}], v{vL32} offset:{L_S+16}")
    ldsspin("L_c2", vZ, L_C2, "9", sleep=1, extra=sextra)
    stamp(4)
    M = 62; l = 61
    e(f"v_max3_f32 v{M}, v{S}, v{S+1}, v{S+2}")
    e(f"v_max3_f32 v{M+1}, v{S+3}, v{S+4}, v{S+5}")
    e(f"v_max3_f32 v{M}, v{M}, v{S+6}, v{S+7}")
    e(f"v_max_f32 v{M}, v{M}, v{M+1}")
    for sh in (8, 4, 2, 1):
        e("s_nop 1")
        e(f"v_max_f32_dpp v{M}, v{M}, v{M} row_ror:{sh} {DPP}")
    xrow_op("v_max_f32", M, M + 1, only16=True)
    e(f"v_mul_f32 v{M}, v{vT3}, v{M}")
    e(f"v_perm_b32 v{ST}, v{M}, v{vTag}, s{sTS}")
    for k in range(8): e(f"v_fma_f32 v{S+k}, v{S+k}, v{vT3}, -v{ST}")
    for k in range(8): e(f"v_exp_f32 v{S+k}, v{S+k}")
    for k in range(4): e(f"v_cvt_pk_bf16_f32 v{FA+k}, v{S+2*k}, v{S+2*k+1}")
    e(f"ds_write_b128 v{vL16}, v[{FA}:{FA+3}] offset:{L_P}")
    flagset(L_PF, vT2)
    stamp(5)
    e(f"ds_read_b32 v{vG_}, v{vZ} offset:{L_G}")
    pkadd(S, S, S + 4)
    e(f"v_pk_add_f32 v[{S}:{S+1}], v[{S}:{S+1}], v[{S+2}:{S+3}]")
    e(f"v_add_f32 v{S}, v{S}, v{S+1}")
    for sh in (8, 4, 2, 1):
        e("s_nop 1")
        e(f"v_add_f32_dpp v{S}, v{S}, v{S} row_ror:{sh} {DPP}")
    xrow_op("v_add_f32", S, S + 1, only16=True)
    e(f"v_perm_b32 v{ST+1}, v{S}, v{vTag}, s{sTS+1}")
    e(f"v_perm_b32 v{ST+2}, v{ST}, v{vTag}, s{sTS+2}")
    e(f"v_perm_b32 v{ST+3}, v{ST}, v{vTag}, s{sTS+3}")
    e("s_mov_b32 exec_lo, 0xf")
    e("s_mov_b32 exec_hi, 0xf")
    e("s_cmp_eq_u32 s38, 0")
    e("s_cbranch_scc0 L_ss_b")
    e(f"buffer_store_dwordx4 v[{ST}:{ST+3}], v{vSA}, s[{sWS}:{sWS+3}], s77 offen offset:1024")
    e("s_branch L_ss_d")
    lab("L_ss_b")
    e(f"buffer_store_dwordx4 v[{ST}:{ST+3}], v{vSA}, s[{sWS}:{sWS+3}], s77 offen offset:1024 {SP}")
    lab("L_ss_d")
    e("s_mov_b64 exec, 0xffff")
    e("s_cmp_lg_u32 s38, 0")
    e("s_cbranch_scc1 L_sib_fail")
    e("s_mov_b64 s[66:67], 0xffff")
    mpoll("L_sib", [SB], 66, 64, lambda k, r: e(f"buffer_load_dwordx4 v[{r}:{r+3}], v{vL256}, s[{sWS}:{sWS+3}], s39 offen {LP}"),
          (0, 4, 3), base="0xffff", init=False, precheck=True, limit=4, fail="L_sib_fail")
    e(f"v_xor_b32 v{FA}, v{SB+3}, v{vXid}")
    e(f"v_and_b32 v{FA}, s7, v{FA}")
    e(f"v_cmp_ne_u32 vcc, 0, v{FA}")
    if not abl: e("s_cbranch_vccnz L_sib_fail")
    flagset(L_CF, vT1)
    lab("L_sib_fail")
    e("s_mov_b64 exec, -1")
    SR = 112; OR_ = 116; O2 = 56
    mpoll("L_st", [SR], 66, 64, lambda k, r: e(f"buffer_load_dwordx4 v[{r}:{r+3}], v{vGS}, s[{sWS}:{sWS+3}], s74 offen {LP}"), SD)
    e(f"v_max_f32_dpp v{M}, v{SR}, v{SR} row_ror:8 {DPP}")
    e("s_nop 1")
    e(f"v_max_f32_dpp v{M}, v{M}, v{M} row_ror:4 {DPP}")
    xrow_op("v_max_f32", M, vT0)
    e(f"v_sub_f32 v{M}, v{SR}, v{M}")
    e(f"v_exp_f32 v{M}, v{M}")
    e("s_waitcnt lgkmcnt(0)")
    e(f"v_mul_f32 v{l}, v{SR+1}, v{M}")
    for sh in (8, 4):
        e("s_nop 1")
        e(f"v_add_f32_dpp v{l}, v{l}, v{l} row_ror:{sh} {DPP}")
    xrow_op("v_add_f32", l, vT0)
    e(f"v_rcp_f32 v{l}, v{l}")
    e(f"v_mul_f32 v{M}, v{M}, v{vG_}")
    e(f"v_mul_f32 v{M}, v{M}, v{l}")
    stamp(2)
    e(f"s_movk_i32 s66, {PR_V0 + OSTART + 1}")
    ldsspin("L_ow", vL4, L_PR, "s66", sleep=2)
    mpoll("L_o", [OR_], 68, 64, lambda k, r: e(f"buffer_load_dwordx4 v[{r}:{r+3}], v{vGA}, s[{sWS}:{sWS+3}], s78 offen {LP}"), OD)
    stamp(6)
    e(f"v_pk_mul_f32 v[{O2}:{O2+1}], v[{OR_}:{OR_+1}], v[{M}:{M+1}] op_sel:[0,0] op_sel_hi:[1,0]")
    e(f"v_pk_mul_f32 v[{O2+2}:{O2+3}], v[{OR_+2}:{OR_+3}], v[{M}:{M+1}] op_sel:[0,0] op_sel_hi:[1,0]")
    red16(O2)
    e(f"v_cvt_pk_bf16_f32 v{O2}, v{O2}, v{O2}")
    e("s_mov_b32 exec_lo, 0x000f000f")
    e("s_mov_b32 exec_hi, 0x000f000f")
    e(f"ds_write_b16 v{vA1}, v{O2} offset:{L_O}")
    flagset(L_OF, vT1)
    stamp(7)
    e("s_branch L_finb4" if stamps else "s_endpgm")

    lab("L_kv")
    TMP = 28
    VD = 32; LD = 64; KF = 84; QF = 116; S = 132; KA = 140
    vWO, vW2, vMX2, vHA, vGg, vB2, vSW, vW2b = 144, 145, 146, 147, 148, 149, 150, 151
    HV = 152; vVA = 156; vOne = 157; vOut = 159
    sKW = 37
    e(f"s_sub_u32 s{sKW}, s{sW}, 2")
    e(f"s_cmp_eq_u32 s{sW}, 10")
    e("s_cbranch_scc1 L_w10")
    def common_setup():
        e("s_waitcnt lgkmcnt(0)")
        e(f"s_load_dword s{sTag}, s[32:33], {WSB}")
        srd(sWS, 32, 536870912)
        selsetup()
        e(f"v_lshl_add_u32 v{vT0}, v{vG}, 3, v{vJ}")
        e(f"v_lshrrev_b32 v{vT1}, 2, v{vT0}")
        e(f"v_lshlrev_b32 v{vT1}, 14, v{vT1}")
        e(f"v_and_b32 v{vT0}, 3, v{vT0}")
        e(f"v_lshl_add_u32 v{vA0}, v{vT0}, 4, v{vT1}")
        e("s_lshl_b32 s74, s4, 6")
        e(f"s_lshl_b32 s75, s{sKW}, 16")
        e("s_add_u32 s74, s74, s75")
        e(f"s_add_u32 s74, s74, {FP}")
        if FPT == "w":
            for r in range(4): e(f"v_mov_b32 v{ACC+r}, 0")
            hstore(ACC, 74, vA0, SP)
        if FPT == "r":
            e("s_mov_b64 exec, 0x00ff00ff")
            e(f"buffer_load_dwordx4 v[{TMP}:{TMP+3}], v{vA0}, s[{sWS}:{sWS+3}], s74 offen sc1")
            e("s_mov_b64 exec, -1")
        e(f"s_lshl_b32 s75, s{sKW}, 7")
        e(f"v_lshl_add_u32 v{vT0}, v{vJ}, 4, s75")
        e(f"v_mul_u32_u24 v{vWO}, {2*1152}, v{vSub}")
        e(f"v_add_u32 v{vWO}, v{vWO}, v{vT0}")
        e(f"v_mul_u32_u24 v{vW2}, 1152, v{vSub}")
        e(f"v_add_u32 v{vW2}, v{vW2}, v{vT0}")
        e(f"v_min_u32 v{vT1}, 1, v{vSub}")
        e(f"v_mul_u32_u24 v{vW2b}, 1152, v{vT1}")
        e(f"v_add_u32 v{vW2b}, v{vW2b}, v{vT0}")
        e("s_and_b32 s75, s4, 1")
        e("s_lshl_b32 s75, s75, 3")
        e(f"v_lshl_add_u32 v{vHA}, v{vSub}, 2, s75")
        e(f"v_lshlrev_b32 v{vA1}, 2, v{vSub}")
        srd(sC, 30, 1152)
        srd(sD, 26, 1152)
        e("s_lshr_b32 s75, s2, 2"); e("s_lshl_b32 s75, s75, 7")
        e("s_and_b32 s76, s2, 1"); e("s_lshl_b32 s76, s76, 6"); e("s_add_u32 s75, s75, s76")
        e("s_and_b32 s76, s2, 2"); e("s_lshl_b32 s76, s76, 2"); e("s_add_u32 s77, s75, s76")
        e(f"v_and_b32 v{vT0}, 3, v{vLane}")
        e(f"v_lshl_add_u32 v{vT2}, v{vG}, 2, v{vT0}")
        e(f"v_lshlrev_b32 v{vT0}, 4, v{vT0}")
        e(f"v_bfe_u32 v{vT1}, v{vLane}, 2, 2")
        e(f"v_lshl_add_u32 v{vOut}, v{vT1}, 1, v{vT0}")
        e("s_lshl_b32 s76, s2, 14")
        e(f"s_lshl_b32 s75, s{sKW}, 11")
        e("s_add_u32 s76, s76, s75")
        e(f"s_add_u32 s76, s76, {FP}")
        e(f"s_lshl_b32 s75, s{sKW}, 2")
        e(f"v_lshl_add_u32 v{vMX2}, v{vT2}, 5, s75")
        e(f"v_lshlrev_b32 v{vVA}, 5, v{vN}")
        e(f"v_mov_b32 v{vOne}, 1")
        e("s_waitcnt lgkmcnt(0)")
        tagsetup()
    common_setup()
    e("s_cmp_ge_u32 s2, 36")
    e("s_cbranch_scc1 L_nored0")
    e(f"s_cmp_lg_u32 s{sW}, 2")
    e("s_cbranch_scc1 L_nored0")
    e(f"buffer_load_ushort v{vB2}, v{vOut}, s[{sD}:{sD+3}], s77 offen nt")
    e(f"buffer_load_ushort v{vT3}, v{vOut}, s[{sC}:{sC+3}], s77 offen nt")
    lab("L_nored0")
    e(f"s_lshl_b32 s38, s{sKW}, 12")
    e(f"s_add_u32 s38, s38, {L_K}")
    e(f"v_and_b32 v{vT0}, 3, v{vN}")
    e(f"v_lshrrev_b32 v{vT1}, 2, v{vN}")
    e(f"v_lshl_add_u32 v{vT0}, v{vT0}, 2, v{vT1}")
    e(f"v_xor_b32 v{vT1}, v{vG}, v{vN}")
    e(f"v_lshlrev_b32 v{vT1}, 4, v{vT1}")
    e(f"v_lshl_add_u32 v{vT0}, v{vT0}, 8, v{vT1}")
    e(f"v_add_u32 v{KA}, s38, v{vT0}")
    for k in range(1, 4): e(f"v_xor_b32 v{KA+k}, {64*k}, v{KA}")
    e(f"v_lshrrev_b32 v{vT0}, 3, v{vN}")
    e(f"v_lshlrev_b32 v{vT1}, 8, v{vT0}")
    e(f"v_lshl_add_u32 v{vT1}, v{vG}, 4, v{vT1}")
    e(f"s_lshl_b32 s66, s{sKW}, 4")
    e(f"v_lshl_add_u32 v{vSW}, v{vSub}, 8, s66")
    e(f"s_add_u32 s66, s75, {PR_K0 + 32 + 4}")
    e("s_barrier")
    def qextra():
        for k in range(4):
            e(f"ds_read_b128 v[{QF+4*k}:{QF+4*k+3}], v{vT1} offset:{L_Q+64*k}")
    ldsspin("L_qf", vZ, L_QF, "1", sleep=4, extra=qextra)
    stamp(4)
    ldsspin("L_kw", vL4, L_PR, "s66", sleep=1)
    for t in range(2):
        for k in range(4):
            r = KF + 16 * t + 4 * k
            e(f"ds_read_b128 v[{r}:{r+3}], v{KA+k} offset:{32768*t}")
    for t in range(2):
        for k in range(4):
            e(f"s_waitcnt lgkmcnt({7-4*t-k})")
            mfma(S + 4 * t, KF + 16 * t + 4 * k, QF + 4 * k, "0" if k == 0 else None)
    e("s_mov_b32 exec_lo, 0x01010101")
    e("s_mov_b32 exec_hi, 0x01010101")
    e(f"ds_write_b128 v{vSW}, v[{S}:{S+3}] offset:{L_S}")
    e("s_nop 4")
    e(f"ds_write_b128 v{vSW}, v[{S+4}:{S+7}] offset:{L_S+128}")
    e("s_mov_b64 exec, 1")
    e(f"ds_add_u32 v{vZ}, v{vOne} offset:{L_C2}")
    e("s_mov_b64 exec, -1")
    stamp(5)
    e("s_waitcnt vmcnt(0)")
    lab("L_tail")
    def hextra():
        for u in range(3):
            e(f"ds_read_b32 v{HV+u}, v{vHA} offset:{L_H+32*u}")
        e(f"ds_read_b32 v{vGg}, v{vZ} offset:{L_G}")
    ldsspin("L_hf", vZ, L_HF, "1", sleep=4, extra=hextra)
    e(f"v_cmp_gt_u32 vcc, 2, v{vSub}")
    e(f"v_sub_f32 v{vGg}, 1.0, v{vGg}")
    e("s_nop 0")
    e(f"v_cndmask_b32 v{HV+2}, 0, v{HV+2}, vcc")
    for u in range(3): e(f"v_mul_f32 v{HV+u}, v{HV+u}, v{vGg}")
    e(f"v_cvt_pk_bf16_f32 v{HV}, v{HV}, v{HV+1}")
    e(f"v_cvt_pk_bf16_f32 v{HV+1}, v{HV+2}, v{HV+2}")
    abuild(KF, HV, 0); abuild(KF + 4, HV, 1); abuild(KF + 8, HV + 1, 0)
    e(f"s_movk_i32 s66, {PR_W2}")
    e(f"s_movk_i32 s67, {PR_ALL}")
    mpoll_init([32, 36], 68)
    ldsspin("L_w2f", vL4, L_PR, "s66", sleep=4)
    e(f"ds_read_b128 v[{LD+8}:{LD+11}], v{vW2} offset:{L_W2}")
    e(f"ds_read_b128 v[{LD+12}:{LD+15}], v{vW2} offset:{L_W2+8*1152}")
    e(f"ds_read_b128 v[{LD+16}:{LD+19}], v{vW2b} offset:{L_W2+16*1152}")
    e("s_waitcnt lgkmcnt(0)")
    for u in range(3):
        mfma(ACC, KF + 4 * u, LD + 8 + 4 * u, "0" if u == 0 else None)
    stamp(6)
    e("s_mov_b32 s79, 0")
    lab("L_last")
    e(f"ds_read_b32 v{vT0}, v{vL4} offset:{L_PR}")
    e(f"ds_read_b32 v{vT1}, v{vZ} offset:{L_OF}")
    e(f"ds_read_b32 v{HV}, v{vA1} offset:{L_O}")
    e("s_waitcnt lgkmcnt(1)")
    e(f"v_mul_u32_u24 v{vT0}, v{vT0}, v{vT1}")
    e(f"v_cmp_gt_u32 vcc, s67, v{vT0}")
    e("s_cbranch_vccz L_last_d")
    if LS: e(f"s_sleep {LS}")
    e("s_add_u32 s79, s79, 1")
    e(f"s_cmp_lt_u32 s79, {SPIN_MAX*16}")
    e("s_cbranch_scc1 L_last")
    lab("L_last_d")
    e(f"ds_read_b128 v[{LD}:{LD+3}], v{vWO} offset:{L_WO}")
    e(f"ds_read_b128 v[{LD+4}:{LD+7}], v{vWO} offset:{L_WO+1152}")
    e("s_waitcnt lgkmcnt(2)")
    abuild(KF + 12, HV, 0)
    abuild(KF + 16, HV, 1)
    e("s_waitcnt lgkmcnt(0)")
    mfma(ACC, KF + 12, LD)
    mfma(ACC, KF + 16, LD + 4)
    stamp(7)
    e("s_nop 7")
    halfadd_tag(ACC, TMP)
    hstore(ACC, 74, vA0, FSP or SP)
    stamp(8)
    e("s_cmp_ge_u32 s2, 36")
    e("s_cbranch_scc1 L_fin")
    e(f"s_cmp_eq_u32 s{sW}, 10")
    e("s_cbranch_scc1 L_finb4" if stamps else "s_cbranch_scc1 L_fin")
    R = 84
    mpoll("L_f", [32, 36], 68, 88, lambda k, r: e(f"buffer_load_dwordx4 v[{r}:{r+3}], v{vL16}, s[{sWS}:{sWS+3}], s76 offen offset:{1024*k} {LP}"), FD, init=False)
    pkadd(R, 32, 36)
    stamp(2)
    red16(R)
    e("s_mov_b32 exec_lo, 0x000f000f")
    e("s_mov_b32 exec_hi, 0x000f000f")
    e(f"ds_write_b32 v{vMX2}, v{R} offset:{L_F}")
    e("s_mov_b64 exec, -1")
    e(f"v_lshlrev_b32 v{vB2}, 16, v{vB2}")
    e("s_waitcnt lgkmcnt(0)")
    e("s_barrier")
    e(f"s_cmp_eq_u32 s{sW}, 2")
    e("s_cbranch_scc0 L_fin")
    e(f"ds_read_b128 v[{R}:{R+3}], v{vVA} offset:{L_F}")
    e(f"ds_read_b128 v[{R+4}:{R+7}], v{vVA} offset:{L_F+16}")
    e("s_waitcnt lgkmcnt(0)")
    pkadd(R, R, R + 4)
    e(f"v_pk_add_f32 v[{R}:{R+1}], v[{R}:{R+1}], v[{R+2}:{R+3}]")
    e(f"v_add_f32 v{R}, v{R}, v{R+1}")
    e(f"v_fma_f32 v{R}, v{vB2}, v{vGg}, v{R}")
    e(f"v_cvt_pk_bf16_f32 v{R}, v{R}, v{R}")
    e("s_mov_b64 exec, 0xffff")
    e(f"buffer_store_short v{R}, v{vOut}, s[{sC}:{sC+3}], s77 offen")
    e("s_cmp_eq_u32 s2, 0")
    e("s_cbranch_scc0 L_fin")
    e("s_mov_b64 exec, 1")
    e(f"s_mov_b32 s66, {WSB}")
    e(f"buffer_store_dword v{vTag}, v{vZ}, s[{sWS}:{sWS+3}], s66 offen")
    e("s_branch L_fin")

    lab("L_w10")
    e(f"v_lshlrev_b32 v{vT2}, 5, v{vLane}")
    e("s_waitcnt lgkmcnt(0)")
    B1 = VD + 24
    srd(sA, 8, 1152)
    srd(sB, 28, 1152)
    srd(sC, 22, 9216)
    e(f"buffer_load_dwordx4 v[{VD}:{VD+3}], v{vT2}, s[{sA}:{sA+3}], 0 offen {XP}")
    e(f"buffer_load_dwordx4 v[{VD+4}:{VD+7}], v{vT2}, s[{sA}:{sA+3}], 0 offen offset:16 {XP}")
    e(f"buffer_load_dwordx4 v[{VD+8}:{VD+11}], v{vT2}, s[{sB}:{sB+3}], 0 offen {XP}")
    e(f"buffer_load_dwordx4 v[{VD+12}:{VD+15}], v{vT2}, s[{sB}:{sB+3}], 0 offen offset:16 {XP}")
    e("s_mul_i32 s38, s4, 18")
    e("s_lshr_b32 s38, s38, 2")
    e("s_lshl_b32 s76, s38, 3")
    e(f"v_lshlrev_b32 v{vT0}, 3, v{vLane}")
    e("s_mov_b64 exec, 0x1f")
    e(f"buffer_load_dwordx2 v[{B1}:{B1+1}], v{vT0}, s[{sC}:{sC+3}], s76 offen nt")
    e(f"s_lshl_b32 s66, s{sH}, 23")
    e(f"s_add_u32 s66, s66, {28672*256}")
    e(f"s_lshl_b32 s67, s{sH}, 4")
    e(f"s_add_u32 s67, s67, s{sS}")
    e(f"s_mul_i32 s67, s67, {16*1152}")
    e(f"s_mul_i32 s68, s4, {18*1152}")
    srd(sA, 12, 134217728)
    srd(sB, 16, 4718592)
    srd(sC, 24, 5308416)
    srd(sD, 20, 5308416)
    e(f"v_lshlrev_b32 v{vT0}, 21, v{vLane}")
    e("s_mov_b64 exec, 1")
    e(f"buffer_load_dword v{VD+18}, v{vZ}, s[{sA}:{sA+3}], s66 offen nt")
    e(f"buffer_load_dword v{VD+19}, v{vZ}, s[{sB}:{sB+3}], s67 offen nt")
    e(f"buffer_load_dword v{VD+20}, v{vZ}, s[{sC}:{sC+3}], s68 offen nt")
    e("s_mov_b64 exec, 7")
    e(f"buffer_load_dword v{VD+21}, v{vT0}, s[{sD}:{sD+3}], 0 offen {XP}")
    e("s_mov_b64 exec, -1")
    common_setup()
    e("s_barrier")
    e(f"v_mov_b32 v{vGg}, 0")
    e(f"s_waitcnt vmcnt({6 if FPT else 5})")
    for k in range(8):
        e(f"v_dot2_f32_bf16 v{vGg}, v{VD+k}, v{VD+8+k}, v{vGg}")
    e("s_nop 2")
    for sh in (8, 4, 2, 1):
        e(f"v_add_f32_dpp v{vGg}, v{vGg}, v{vGg} row_ror:{sh} {DPP}")
        e("s_nop 1")
    xrow_op("v_add_f32", vGg, vT0)
    e(f"v_mul_f32 v{vGg}, {f32(-math.log2(math.e))}, v{vGg}")
    e(f"v_exp_f32 v{vGg}, v{vGg}")
    e("s_nop 0")
    e(f"v_add_f32 v{vGg}, 1.0, v{vGg}")
    e(f"v_rcp_f32 v{vGg}, v{vGg}")
    e("s_mov_b64 exec, 1")
    e(f"ds_write_b32 v{vZ}, v{vGg} offset:{L_G}")
    e(f"ds_add_u32 v{vZ}, v{vOne} offset:{L_C2}")
    e("s_mov_b64 exec, -1")
    stamp(1)
    HA = VD + 26
    e(f"v_add_u32 v{vT0}, s38, v{vLane}")
    e(f"v_lshrrev_b32 v{vT1}, 4, v{vT0}")
    e(f"v_lshlrev_b32 v{vT1}, 8, v{vT1}")
    e(f"v_and_b32 v{vT2}, 1, v{vT0}")
    e(f"v_lshl_add_u32 v{vT1}, v{vT2}, 7, v{vT1}")
    e(f"v_bfe_u32 v{vT2}, v{vT0}, 1, 3")
    e(f"v_lshl_add_u32 v{HA}, v{vT2}, 4, v{vT1}")
    e(f"s_mov_b32 s66, {HP}")
    e(f"s_mov_b32 s67, {HP+18432}")
    e(f"s_mov_b32 s68, {HP+2*18432}")
    e(f"s_movk_i32 s69, {PR_HPUB}")
    ldsspin("L_hp", vL4, L_PR, "s69", sleep=4)
    e("s_waitcnt vmcnt(0)")
    e("s_mov_b64 exec, 0x1f")
    H = 64
    e(f"v_lshlrev_b32 v{H+12}, 16, v{B1}")
    e(f"v_and_b32 v{H+13}, 0xffff0000, v{B1}")
    e(f"v_lshlrev_b32 v{H+14}, 16, v{B1+1}")
    e(f"v_and_b32 v{H+15}, 0xffff0000, v{B1+1}")
    mpoll("L_h", [116, 120, 124], 40, 40, lambda k, r: e(f"buffer_load_dwordx4 v[{r}:{r+3}], v{HA}, s[{sWS}:{sWS+3}], s{66+k} offen {LP}"), HD, base="0x1f", switch=[66, 67, 68])
    pkadd(H, 116, 120); pkadd(H + 8, 124, H + 12)
    stamp(3)
    pkadd(H, H, H + 8)
    c1 = -2.0 * math.sqrt(2.0 / math.pi) * math.log2(math.e)
    e(f"v_mov_b32 v{H+12}, {f32(c1)}")
    e(f"v_mov_b32 v{H+13}, {f32(c1 * 0.044715)}")
    for r in range(4): e(f"v_mul_f32 v{H+4+r}, v{H+r}, v{H+r}")
    for r in range(4): e(f"v_fma_f32 v{H+4+r}, v{H+4+r}, v{H+13}, v{H+12}")
    for r in range(4): e(f"v_mul_f32 v{H+4+r}, v{H+4+r}, v{H+r}")
    for r in range(4): e(f"v_exp_f32 v{H+4+r}, v{H+4+r}")
    for r in range(4): e(f"v_add_f32 v{H+4+r}, 1.0, v{H+4+r}")
    for r in range(4): e(f"v_rcp_f32 v{H+4+r}, v{H+4+r}")
    for r in range(4): e(f"v_mul_f32 v{H+r}, v{H+r}, v{H+4+r}")
    e(f"ds_write_b128 v{vL16}, v[{H}:{H+3}] offset:{L_H}")
    flagset(L_HF, vOne)
    e("s_branch L_tail")

    if stamps:
        lab("L_finb4")
        e("s_cmp_ge_u32 s2, 36")
        e("s_cbranch_scc1 L_fin")
        e("s_barrier")
    lab("L_fin")
    if stamps:
        e("s_mov_b64 exec, -1")
        e("s_waitcnt vmcnt(0)")
        stamp(9)
        e("s_waitcnt lgkmcnt(0)")
        e("s_sleep 100")
        for i in range(20): e(f"v_mov_b32 v{32+i}, s{80+i}")
        e(f"s_mul_i32 s66, s2, {NW}")
        e(f"s_add_u32 s66, s66, s{sW}")
        e("s_mul_i32 s66, s66, 80")
        e(f"s_add_u32 s66, s66, {STAMP}")
        e("s_mov_b64 exec, 1")
        for i in range(5):
            e(f"buffer_store_dwordx4 v[{32+4*i}:{35+4*i}], v{vZ}, s[{sWS}:{sWS+3}], s66 offen offset:{16*i}")
    lab("L_end")
    e("s_endpgm")
    lab("L_codeend")
    txt = header(256, NW * 64, LDS_BYTES) + "\n".join(L) + "\n" + footer(168, 100)
    open(out, "w").write(txt)

if __name__ == "__main__":
    if len(sys.argv) > 1:
        for spec in sys.argv[1:]:
            name, kw = spec.split("=", 1)
            kw = eval("dict(%s)" % kw)
            gen(name + "s.s", stamps=True, **kw)
            gen(name + ".s", stamps=False, **kw)
    else:
        gen("k8.s", stamps=False)
        gen("k8s.s", stamps=True)
```

```python
import sys, math, struct
from gen_common import *

def f32(x):
    return "0x%08x" % struct.unpack("<I", struct.pack("<f", x))[0]

STAMP = 0x10000000
L_Q = 0; L_H = 640; L_O = 768; L_G = 832
L_FL = 848
L_QF, L_HF, L_C2, L_PF, L_CF, L_OF = L_FL, L_FL + 4, L_FL + 8, L_FL + 12, L_FL + 16, L_FL + 20
L_F = 1152
L_PR = 1792
L_S = 2048
L_P = 4096
L_WO = 5120
L_W2 = L_WO + 18432
L_K = 45056
LDS_BYTES = L_K + 65536
NW = 11
SPIN_MAX = 200000

def gen(out, stamps=False, order="qKwVL", W1=24, HASH=0x9E3779B1, QD=(25, 0, 0, 1), HD=(50, 0, 0, 1), OD=(0, 2, 3, 3), FD=(12, 1, 4),
        LP="sc1", SP="sc1", WSB=0, XP="", SD=(30, 0, 0, 1), NA=12, FORCEB=False, DBG=None, PT=60, WB=None, WK=None, WV=None, IDLE=True, CQX=0, IL=None, OSTART=63, W2=32, LS=1, FPT=None, FSP=None, FLP=None, abl="", BIGW=False, EARLYP=True, EARLYW=True, OWN=False, WBL=None, OSP="", BAR=True):
    QP = WSB + 0x10000; HP = WSB + 0x20000; DAB = 0x40000
    OP = WSB + 0x80000; DOB = 0x48000; FP = WSB + 0x110000
    L = []
    def e(s):
        if "nostore" in abl and s.startswith("buffer_store_dwordx4") and "s66 offen offset" not in s:
            s = s.replace(" offen", " offen").replace("s[56:59]", "s[96:99]")
        if "nofpub" in abl and s.startswith("buffer_store_dwordx4") and "s74 offen" in s:
            s = s.replace("s[56:59]", "s[96:99]")
        L.append("    " + s)
    def lab(s): L.append(s + ":")
    def stamp(i):
        if stamps and not (abl and i >= 8): e(f"s_memrealtime s[{80+2*i}:{81+2*i}]")
    def srd(d, b, n):
        if d == 56 and abl:
            e(f"s_mov_b64 s[96:97], s[{b}:{b+1}]"); e("s_mov_b32 s98, 0"); e("s_mov_b32 s99, 0x20000")
        e(f"s_mov_b64 s[{d}:{d+1}], s[{b}:{b+1}]"); e(f"s_mov_b32 s{d+2}, {n}"); e(f"s_mov_b32 s{d+3}, 0x20000")
    vXid, vL4, vLane, vN, vG, vSub, vJ, vTag, vL16, vT0, vT1, vT2, vT3, vA0, vA1, vZ = range(16)
    SEL = 16; ACC = 24
    sW, sH, sS, sTag = 3, 35, 36, 34
    sA, sB, sC, sD, sWS = 40, 44, 48, 52, 56
    sTS = 60; sCK = 64
    def tagsetup():
        e(f"s_add_u32 s{sTag}, s{sTag}, 0x01010101")
        e(f"s_cmp_eq_u32 s{sTag}, 0")
        e(f"s_cselect_b32 s{sTag}, 0x01010101, s{sTag}")
        e(f"v_mov_b32 v{vTag}, s{sTag}")
    def tag4(dst, src):
        for k in range(4):
            e(f"v_perm_b32 v{dst+k}, v{src+k}, v{vTag}, s{sTS+k}")
    def mask4(dst, src, last="0xffffff00"):
        for k in range(4):
            e(f"v_and_b32 v{dst+k}, {last if k == 3 else '0xffffff00'}, v{src+k}")
    def check4(src, dst):
        e(f"v_perm_b32 v{dst}, v{src+1}, v{src}, s{sCK}")
        e(f"v_perm_b32 v{dst+1}, v{src+3}, v{src+2}, s{sCK}")
        e(f"v_lshl_or_b32 v{dst}, v{dst+1}, 16, v{dst}")
    def mpoll_init(regs, msk, base="-1"):
        for k, r in enumerate(regs):
            e(f"v_not_b32 v{r}, v{vTag}")
            e(f"s_mov_b64 s[{msk+2*k}:{msk+2*k+1}], {base}")
    def mpoll_issue(name, regs, msk, issue, base="-1"):
        for k, r in enumerate(regs):
            e(f"s_mov_b64 exec, s[{msk+2*k}:{msk+2*k+1}]")
            if len(regs) > 1: e(f"s_cbranch_execz {name}_s{k}")
            issue(k, r)
            if len(regs) > 1: lab(f"{name}_s{k}")
        e(f"s_mov_b64 exec, {base}")
    def mpoll_check(regs, msk, tmp, done):
        for k, r in enumerate(regs):
            check4(r, tmp + 2 * k)
        for k, r in enumerate(regs):
            e(f"v_cmp_ne_u32 s[{msk+2*k}:{msk+2*k+1}], v{tmp+2*k}, v{vTag}")
        if len(regs) == 1:
            e(f"s_cmp_eq_u64 s[{msk}:{msk+1}], 0")
            e(f"s_cbranch_scc1 {done}")
        else:
            e(f"s_or_b64 vcc, s[{msk}:{msk+1}], s[{msk+2}:{msk+3}]")
            for k in range(2, len(regs)):
                e(f"s_or_b64 vcc, vcc, s[{msk+2*k}:{msk+2*k+1}]")
            e(f"s_cbranch_scc0 {done}")
    def mpoll(name, regs, msk, tmp, issue, D, base="-1", cnt=79, init=True, precheck=False, switch=None, limit=SPIN_MAX*4, fail=None):
        if "nopoll" in abl or ("no" + name + ",") in abl: return
        if init: mpoll_init(regs, msk, base)
        e(f"s_mov_b32 s{cnt}, 0")
        if precheck: mpoll_check(regs, msk, tmp, f"{name}_done")
        if D[0]: e(f"s_sleep {D[0]}")
        lab(f"{name}_loop")
        mpoll_issue(name, regs, msk, issue, base)
        for c in range(D[2]):
            if D[1]: e(f"s_sleep {D[1]}")
            mpoll_check(regs, msk, tmp, f"{name}_done")
        if len(D) > 3:
            e(f"s_waitcnt vmcnt({(D[3]-1)*len(regs)})")
            mpoll_check(regs, msk, tmp, f"{name}_done")
        else:
            e("s_waitcnt vmcnt(24)")
        e(f"s_add_u32 s{cnt}, s{cnt}, 1")
        if switch:
            e(f"s_cmp_lt_u32 s{cnt}, {NA}")
            e(f"s_cbranch_scc1 {name}_loop")
            e("s_waitcnt vmcnt(0)")
            mpoll_check(regs, msk, tmp, f"{name}_done")
            for r in switch: e(f"s_xor_b32 s{r}, s{r}, {DAB}")
        e(f"s_cmp_lt_u32 s{cnt}, {limit}")
        e(f"s_cbranch_scc1 {name}_loop")
        if fail: e(f"s_branch {fail}")
        lab(f"{name}_done")
    def ldsspin(name, addr, off, thr, cnt=79, sleep=1, extra=None, hook=None):
        e(f"s_mov_b32 s{cnt}, 0")
        lab(name)
        e(f"ds_read_b32 v{vT0}, v{addr} offset:{off}")
        if extra: extra()
        e("s_waitcnt lgkmcnt(0)")
        e(f"v_cmp_gt_u32 vcc, {thr}, v{vT0}")
        e(f"s_cbranch_vccz {name}_d")
        if sleep: e(f"s_sleep {sleep}")
        e(f"s_add_u32 s{cnt}, s{cnt}, 1")
        if hook: hook()
        e(f"s_cmp_lt_u32 s{cnt}, {SPIN_MAX*16}")
        e(f"s_cbranch_scc1 {name}")
        lab(name + "_d")
    def consts():
        for w in range(4): e(f"s_mov_b32 s{sTS+w}, 0x0706050{w}")
        e(f"s_mov_b32 s{sCK}, 0x0c0c0400")
    def selsetup():
        e(f"v_and_b32 v{vT0}, 1, v{vLane}")
        e(f"v_cmp_eq_u32 vcc, 1, v{vT0}")
        e(f"v_mov_b32 v{vT1}, 0x0c0c0100"); e(f"v_mov_b32 v{vT2}, 0x01000c0c")
        e(f"v_cndmask_b32 v{vT1}, v{vT1}, v{vT2}, vcc")
        e(f"v_mov_b32 v{vT2}, 0x0c0c0302"); e(f"v_mov_b32 v{vT3}, 0x03020c0c")
        e(f"v_cndmask_b32 v{vT2}, v{vT2}, v{vT3}, vcc")
        e(f"v_mov_b32 v{vT3}, 0x0c0c0c0c")
        e(f"v_lshrrev_b32 v{vT0}, 1, v{vJ}")
        for w in range(4):
            e(f"v_cmp_eq_u32 vcc, {w}, v{vT0}")
            e(f"s_mov_b32 s{sTS+w}, 0x0706050{w}")
            e("s_nop 0")
            e(f"v_cndmask_b32 v{SEL+w}, v{vT3}, v{vT1}, vcc")
            e(f"v_cndmask_b32 v{SEL+4+w}, v{vT3}, v{vT2}, vcc")
        e(f"s_mov_b32 s{sCK}, 0x0c0c0400")
    def abuild(dst, src, par):
        for w in range(4):
            e(f"v_perm_b32 v{dst+w}, v{src}, v{src}, v{SEL+4*par+w}")
    def mfma(d, a, b, c=None):
        cs = f"v[{d}:{d+3}]" if c is None else c
        e(f"v_mfma_f32_16x16x32_bf16 v[{d}:{d+3}], v[{a}:{a+3}], v[{b}:{b+3}], {cs}")
    DPP = "row_mask:0xf bank_mask:0xf"
    def halfadd_tag(acc, tmp):
        for r in range(4):
            e(f"v_permlane32_swap_b32 v{acc+r}, v{tmp+r}")
        for r in range(4):
            e(f"v_add_f32_dpp v{acc+r}, v{tmp+r}, v{acc+r} row_ror:8 {DPP}")
        tag4(acc, acc)
    def hstore(acc, soff, voff, pol):
        e("s_mov_b64 exec, 0x00ff00ff")
        e(f"buffer_store_dwordx4 v[{acc}:{acc+3}], v{voff}, s[{sWS}:{sWS+3}], s{soff} offen {pol}")
        e("s_mov_b64 exec, -1")
    def xid_setup():
        e("s_getreg_b32 s6, hwreg(HW_REG_XCC_ID)")
        e("s_and_b32 s6, s6, 15")
        e("s_lshl_b32 s6, s6, 8")
        e("s_movk_i32 s7, 0xf00")
        e(f"v_mov_b32 v{vXid}, s6")
    def xrow_op(op, x, t, only16=False):
        e(f"v_mov_b32 v{t}, v{x}")
        e("s_nop 1")
        e(f"v_permlane16_swap_b32 v{t}, v{x}")
        e(f"{op} v{x}, v{x}, v{t}")
        if only16: return
        e(f"v_mov_b32 v{t}, v{x}")
        e("s_nop 1")
        e(f"v_permlane32_swap_b32 v{t}, v{x}")
        e(f"{op} v{x}, v{x}, v{t}")
    def pkadd(d, a, b):
        e(f"v_pk_add_f32 v[{d}:{d+1}], v[{a}:{a+1}], v[{b}:{b+1}]")
        e(f"v_pk_add_f32 v[{d+2}:{d+3}], v[{a+2}:{a+3}], v[{b+2}:{b+3}]")
    def red16(R):
        e("s_nop 1")
        e(f"v_permlane32_swap_b32 v{R}, v{R+2}")
        e(f"v_permlane32_swap_b32 v{R+1}, v{R+3}")
        e(f"v_pk_add_f32 v[{R}:{R+1}], v[{R}:{R+1}], v[{R+2}:{R+3}]")
        e("s_nop 1")
        e(f"v_permlane16_swap_b32 v{R}, v{R+1}")
        e(f"v_add_f32 v{R}, v{R}, v{R+1}")
        for sh in (8, 4):
            e("s_nop 1")
            e(f"v_add_f32_dpp v{R}, v{R}, v{R} row_ror:{sh} {DPP}")
    def flagset(off, vreg):
        e("s_mov_b64 exec, 1")
        e(f"ds_write_b32 v{vZ}, v{vreg} offset:{off}")
        e("s_mov_b64 exec, -1")
    CS = (128 ** -0.5) * math.log2(math.e)

    vm = []
    ops = []
    for p in order:
        if p == "q": ops += [("xq", k) for k in range(3)] + [("q", u) for u in range(18)]
        if p == "w": ops += [("xw", k) for k in range(3)] + [("w", u) for u in range(24)]
        if p == "K": ops += [("K", i) for i in range(64)]
        if p == "V": ops += [("V", i) for i in range(64)]
        if p == "L": ops += [("s", i) for i in range(21)] + [("o", i) for i in range(18)]
    if IL:
        qs = [o for o in ops if o[0] == "q"]; ks = [o for o in ops if o[0] == "K"]
        rest = [o for o in ops if o[0] not in ("xq", "q", "K")]
        mix = []
        while qs:
            mix += qs[:IL[0]]; qs = qs[IL[0]:]
            mix += ks[:IL[1]]; ks = ks[IL[1]:]
        assert len(ks) >= 32
        ops = [o for o in ops if o[0] == "xq"] + mix + ks + rest
    pos = {o: j for j, o in enumerate(ops)}
    PR_K0 = pos[("K", 32)] - 32; PR_V0 = pos[("V", 0)]
    PR_HPUB = pos[("w", 23)] + 1
    PR_W2 = pos[("s", 20)] + 1
    PR_ALL = len(ops)
    assert pos[("w", 0)] < PR_V0

    ACCQ = 28; ACCH = 32; X = 36; AB = 52; KA = 60; vPR = 64; vW1 = 65; vXW = 66; vHPub = 67; vLast = 68; vPA = 69
    RING = 72; NR = 24
    lab("L_start")
    stamp(0)
    e("s_load_dwordx16 s[8:23], s[0:1], 0")
    e("s_load_dwordx8 s[24:31], s[0:1], 64")
    e("s_load_dwordx2 s[32:33], s[0:1], 104")
    e("s_cmp_ge_u32 s2, 256")
    e("s_cbranch_scc1 L_end")
    e("v_lshrrev_b32 v1, 6, v0")
    e(f"v_and_b32 v{vLane}, 63, v0")
    e(f"v_readfirstlane_b32 s{sW}, v1")
    e(f"v_lshrrev_b32 v{vG}, 4, v{vLane}")
    e(f"v_bfe_u32 v{vT0}, v{vLane}, 3, 1")
    e(f"v_lshl_add_u32 v{vSub}, v{vT0}, 2, v{vG}")
    e(f"v_and_b32 v{vJ}, 7, v{vLane}")
    e(f"v_and_b32 v{vN}, 15, v{vLane}")
    e(f"v_lshlrev_b32 v{vL16}, 4, v{vLane}")
    e(f"v_lshlrev_b32 v{vL4}, 2, v{vLane}")
    e(f"v_mov_b32 v{vZ}, 0")
    e("s_and_b32 s4, s2, 7")
    e(f"s_lshl_b32 s{sH}, s4, 1")
    e("s_bfe_u32 s65, s2, 0x10003")
    e(f"s_add_u32 s{sH}, s{sH}, s65")
    e(f"s_lshr_b32 s{sS}, s2, 4")
    e("s_lshl_b32 s4, s4, 5")
    e("s_lshr_b32 s5, s2, 3")
    e("s_add_u32 s4, s4, s5")
    e(f"s_cmp_eq_u32 s{sW}, 0")
    e("s_cbranch_scc1 L_loader")
    e(f"s_cmp_lg_u32 s{sW}, 1")
    e("s_cbranch_scc1 L_kv")
    e("s_getpc_b64 s[72:73]")
    lab("L_pc")
    e(f"v_lshlrev_b32 v{vT0}, 7, v{vLane}")
    e(f"global_load_dword v32, v{vT0}, s[72:73]")
    e(f"v_add_u32 v{vT0}, 8192, v{vT0}")
    e(f"v_min_u32 v{vT0}, L_codeend-L_pc-4, v{vT0}")
    e(f"global_load_dword v33, v{vT0}, s[72:73]")
    e(f"ds_write_b32 v{vL4}, v{vZ} offset:{L_PR}")
    e(f"ds_write_b32 v{vL4}, v{vZ} offset:{L_FL}")
    e("s_branch L_pwave")
    lab("L_loader")
    e("s_setprio 3")
    e(f"s_lshr_b32 s72, s{sS}, 2")
    e(f"s_and_b32 s73, s{sS}, 3")
    if CQX: e(f"s_xor_b32 s73, s73, {CQX}")
    e(f"s_lshl_b32 s74, s{sH}, 2")
    e("s_add_u32 s73, s73, s74")
    e(f"s_mul_i32 s68, s72, {144*8192}")
    e("s_lshl_b32 s74, s73, 7")
    e("s_add_u32 s68, s68, s74")
    e("s_mul_i32 s69, s72, 288")
    e(f"v_mul_u32_u24 v{vA0}, {18*8192}, v{vSub}")
    e(f"v_lshl_add_u32 v{vA0}, v{vJ}, 4, v{vA0}")
    e(f"v_mul_u32_u24 v{vA1}, 36, v{vSub}")
    e(f"s_mov_b32 s{sA+2}, 4718592"); e(f"s_mov_b32 s{sA+3}, 0x20000")
    e(f"s_movk_i32 s{sB+2}, 1152"); e(f"s_mov_b32 s{sB+3}, 0x20000")
    e(f"v_lshlrev_b32 v{vT0}, 2, v{vG}")
    e(f"v_xor_b32 v{vT0}, v{vT0}, v{vN}")
    e(f"v_lshlrev_b32 v{vT0}, 4, v{vT0}")
    e(f"v_lshl_add_u32 v{KA}, v{vG}, 8, v{vT0}")
    for u in range(1, 4): e(f"v_xor_b32 v{KA+u}, {16*u}, v{KA}")
    e(f"s_lshl_b32 s38, s{sH}, 23")
    e(f"s_lshl_b32 s75, s{sS}, 16")
    e("s_add_u32 s38, s38, s75")
    e(f"s_mul_i32 s75, s2, {HASH}")
    e("s_lshr_b32 s75, s75, 28")
    e("s_lshl_b32 s75, s75, 12")
    e("s_add_u32 s38, s38, s75")
    e(f"s_add_u32 s38, s38, {28672*256}")
    e(f"s_mov_b32 s{sC+2}, 134217728"); e(f"s_mov_b32 s{sC+3}, 0x20000")
    e("s_waitcnt lgkmcnt(0)")
    e(f"s_mov_b64 s[{sA}:{sA+1}], s[14:15]")
    e(f"s_mov_b64 s[{sB}:{sB+1}], s[8:9]")
    e(f"s_mov_b64 s[{sC}:{sC+1}], s[10:11]")

    def late_setup():
        stamp(1)
        e(f"s_load_dword s{sTag}, s[32:33], {WSB}")
        srd(sWS, 32, 536870912)
        e(f"s_lshl_b32 s70, s{sH}, 12")
        e(f"s_lshl_b32 s74, s{sS}, 8")
        if CQX: e(f"s_xor_b32 s74, s74, {CQX*256}")
        e("s_add_u32 s70, s70, s74")
        e(f"s_add_u32 s70, s70, {QP}")
        e(f"v_lshl_add_u32 v{vA1}, v{vG}, 3, v{vJ}")
        e(f"v_lshlrev_b32 v{vA1}, 4, v{vA1}")
        for r in range(4): e(f"v_mov_b32 v{ACC+r}, 0")
        hstore(ACC, 70, vA1, ""); vm.append(None)
        selsetup()
        xid_setup()
        e("s_mov_b32 s78, 0")
        if EARLYW: w1_setup()
    def w1_setup():
        if IDLE:
            e("s_add_u32 s74, s5, 1")
            e("s_lshr_b32 s74, s74, 3")
            e("s_sub_u32 s75, s5, s74")
            e("s_and_b32 s74, s5, 7")
            e("s_cmp_eq_u32 s74, 6")
            e("s_cselect_b32 s75, 27, s75")
        else:
            e("s_mov_b32 s75, s5")
        e("s_mov_b32 s72, 0")
        e("s_cmp_ge_u32 s75, 9"); e("s_addc_u32 s72, s72, 0")
        e("s_cmp_ge_u32 s75, 18"); e("s_addc_u32 s72, s72, 0")
        e("s_and_b32 s73, s2, 7")
        e("s_sub_u32 s73, s73, s72")
        e("s_mul_i32 s73, s73, 9")
        e("s_add_u32 s73, s73, s75")
        e(f"s_mul_i32 s66, s72, {192*9216}")
        e("s_lshl_b32 s74, s73, 7")
        e("s_add_u32 s66, s66, s74")
        e("s_mul_i32 s67, s72, 384")
        e("s_mul_i32 s71, s72, 18432")
        e("s_lshl_b32 s74, s73, 8")
        e("s_add_u32 s71, s71, s74")
        e(f"s_add_u32 s71, s71, {HP}")
        e("s_cmp_ge_u32 s75, 27")
        e("s_cselect_b32 s74, 0x70000000, 0")
        e(f"v_mul_u32_u24 v{vW1}, {24*9216}, v{vSub}")
        e(f"v_lshl_add_u32 v{vW1}, v{vJ}, 4, v{vW1}")
        e(f"v_add_u32 v{vW1}, s74, v{vW1}")
        e(f"v_mul_u32_u24 v{vXW}, 48, v{vSub}")
        e(f"v_add_u32 v{vHPub}, s74, v{vA1}")
        srd(sD, 20, 5308416)
        hstore(ACC, 71, vHPub, ""); vm.append(None)
        e(f"s_mul_i32 s76, s{sH}, 18432")
        e(f"s_mul_i32 s77, s{sS}, 1152")
        e("s_add_u32 s77, s77, s76")
        e(f"s_add_u32 s77, s77, {OP}")
        e(f"buffer_store_dwordx4 v[{ACC}:{ACC+3}], v{vL16}, s[{sWS}:{sWS+3}], s77 offen"); vm.append(None)
        e(f"v_lshlrev_b32 v{vPA}, 7, v{vSub}")
    def send_b(name):
        e("s_cmp_lg_u32 s78, 0")
        e(f"s_cbranch_scc1 {name}")
        e("s_mov_b32 s78, 1")
        e(f"s_add_u32 s70, s70, {DAB}")
        e(f"s_add_u32 s71, s71, {DAB}")
        hstore(ACCQ, 70, vA1, SP)
        hstore(ACCH, 71, vHPub, SP)
        lab(name)
    slot_of = {}
    ringn = [0]
    processed = set()
    def issue(j):
        t, i = ops[j]
        if t in ("q", "w", "V"):
            sl = ringn[0] % NR
            prev = [k for k, v in slot_of.items() if v == sl]
            assert all(k in processed for k in prev), ("ring overrun", j)
            slot_of[j] = sl; ringn[0] += 1
            r = RING + 4 * sl
        if t == "xq":
            e(f"buffer_load_dwordx4 v[{X+4*i}:{X+4*i+3}], v{vA1}, s[{sB}:{sB+3}], s69 offen offset:{16*i} {XP}")
        elif t == "q":
            e(f"buffer_load_dwordx4 v[{r}:{r+3}], v{vA0}, s[{sA}:{sA+3}], s68 offen nt")
            if i < 17: e("s_add_u32 s68, s68, 0x2000")
        elif t == "xw":
            assert pos[("q", 17)] in processed
            e(f"buffer_load_dwordx4 v[{X+4*i}:{X+4*i+3}], v{vXW}, s[{sB}:{sB+3}], s67 offen offset:{16*i} {XP}")
        elif t == "w":
            e(f"buffer_load_dwordx4 v[{r}:{r+3}], v{vW1}, s[{sD}:{sD+3}], s66 offen nt")
            if i < 23: e("s_add_u32 s66, s66, 0x2400")
        elif t == "K":
            e(f"buffer_load_dwordx4 v{KA+(i&3)}, s[{sC}:{sC+3}], s39 offen offset:{1024*(i&3)} nt lds")
        elif t == "V":
            e(f"buffer_load_dwordx4 v[{r}:{r+3}], v{vL16}, s[{sC}:{sC+3}], s39 offen offset:{1024*(i&3)} nt")
        elif t == "s":
            e(f"buffer_load_dwordx4 v{vLast if i == 20 else vL16}, s[{sA}:{sA+3}], s39 offen offset:{1024*(i&3)} nt lds")
        elif t == "o":
            e(f"buffer_load_dwordx4 v{vL16}, s[{sA}:{sA+3}], s39 offen offset:{1024*(i&3)} nt lds")
    def pre_issue(op):
        t, i = op
        if t == "xw" and i == 0 and not EARLYW: w1_setup()
        if t == "V" and i == 0: e(f"s_mov_b64 s[{sC}:{sC+1}], s[12:13]")
        if t in "KV" and i % 4 == 0:
            e(f"s_xor_b32 s39, s38, {1024*i}")
            if t == "K":
                e(f"s_mov_b32 m0, {L_K + 1024*i}")
                return True
        if t == "s" and i == 0:
            srd(sA, 24, 5308416)
            e(f"s_mul_i32 s39, s4, {18*1152}")
            e(f"v_mov_b32 v{vT1}, 0x7fff0000")
            e(f"v_cmp_gt_u32 vcc, 16, v{vLane}")
            e("s_nop 1")
            e(f"v_cndmask_b32 v{vLast}, v{vT1}, v{vL16}, vcc")
        if t == "o" and i == 0:
            srd(sA, 16, 4718592)
            e(f"s_lshl_b32 s39, s{sH}, 4")
            e(f"s_add_u32 s39, s39, s{sS}")
            e(f"s_mul_i32 s39, s39, {16*1152}")
        if t in "so" and i % 4 == 0:
            if i: e("s_add_u32 s39, s39, 4096")
            e(f"s_mov_b32 m0, {(L_W2 if t == 's' else L_WO) + 1024*i}")
            return True
        return False
    def progress(val):
        e(f"v_mov_b32 v{vPR}, {val}")
        e(f"ds_write_b32 v{vL4}, v{vPR} offset:{L_PR}")
    done = [0]
    def pread(qt):
        b = X + 8 * (qt & 1)
        e(f"ds_read_b128 v[{b}:{b+3}], v{vPA} offset:{L_P+32*qt}")
        e(f"ds_read_b128 v[{b+4}:{b+7}], v{vPA} offset:{L_P+32*qt+16}")
    def psrc(u): return X + 8 * ((u >> 4) & 1) + ((u & 15) >> 1)
    def pspin():
        def hook():
            e(f"s_cmp_lg_u32 s79, {PT}")
            e("s_cbranch_scc1 L_pf_nb")
            send_b("L_pf_nb")
        ldsspin("L_pf", vZ, L_PF, "1", sleep=1, extra=lambda: (pread(0), pread(1)), hook=hook)
        abuild(AB, psrc(0), 0); e("s_nop 1")
    def process_a(j):
        t, i = ops[j]
        if t in ("q", "w"):
            acc = ACCQ if t == "q" else ACCH
            if i == 0:
                abuild(AB, X, 0); e("s_nop 1")
            mfma(acc, AB + 4 * (i & 1), RING + 4 * slot_of[j], "0" if i == 0 else None)
        elif t == "V":
            if i == 0 and not EARLYP:
                pspin()
                stamp(7)
                e(f"v_readfirstlane_b32 s76, v{vT0}")
            mfma(ACC, AB + 4 * (i & 1), RING + 4 * slot_of[j], "0" if i == 0 else None)
        processed.add(j)
    def process_b(j):
        t, i = ops[j]
        if t in ("q", "w"):
            NU = 18 if t == "q" else 24
            acc = ACCQ if t == "q" else ACCH
            if i + 1 < NU:
                abuild(AB + 4 * ((i + 1) & 1), X + ((i + 1) >> 1), (i + 1) & 1); e("s_nop 0")
                if EARLYP and t == "w" and i == 22:
                    e(f"ds_read_b32 v{vT0}, v{vZ} offset:{L_PF}")
                    pread(0); pread(1)
            if i == NU - 1:
                stamp(2 if t == "q" else 3)
                if t == "q":
                    e("s_waitcnt lgkmcnt(0)")
                    tagsetup()
                    e("s_nop 2")
                elif EARLYP:
                    e("s_waitcnt lgkmcnt(0)")
                    e(f"v_cmp_gt_u32 vcc, 1, v{vT0}")
                    abuild(AB, psrc(0), 0)
                    e("s_nop 1")
                else:
                    e("s_nop 7")
                halfadd_tag(acc, KA if (EARLYP and t == "w") else AB)
                if t == "q": e(f"v_bfi_b32 v{acc+3}, s7, v{vXid}, v{acc+3}")
                if not FORCEB:
                    hstore(acc, 70 if t == "q" else 71, vA1 if t == "q" else vHPub, ""); vm.append(None)
                if t == "q": e("s_barrier")
                else:
                    progress(j + 1)
                    if EARLYP:
                        e("s_cbranch_vccz L_pok")
                        pspin()
                        lab("L_pok")
                        stamp(7)
                        e(f"v_readfirstlane_b32 s76, v{vT0}")
        elif t == "K":
            if i % 4 == 3 and i >= 32: progress(j + 1)
        elif t == "V":
            if i + 1 < 64:
                if (i + 1) % 16 == 0: e("s_waitcnt lgkmcnt(0)")
                abuild(AB + 4 * ((i + 1) & 1), psrc(i + 1), (i + 1) & 1); e("s_nop 0")
                if (i + 1) % 16 == 0 and (i + 1) // 16 + 1 < 4: pread((i + 1) // 16 + 1)
            if i == 1:
                e("s_cmp_eq_u32 s76, 1")
                e(f"s_cselect_b32 s65, 0, {DOB}")
                e("s_add_u32 s77, s77, s65")
            if i == OSTART: progress(j + 1)
            if i == 63:
                stamp(4)
                e("s_cmp_eq_u32 s76, 1")
                e("s_nop 6")
                tag4(ACC, ACC)
                if OWN: e(f"ds_write_b128 v{vL16}, v[{ACC}:{ACC+3}] offset:{L_S}")
                e("s_cbranch_scc0 L_os_b")
                e(f"buffer_store_dwordx4 v[{ACC}:{ACC+3}], v{vL16}, s[{sWS}:{sWS+3}], s77 offen")
                e("s_branch L_os_d")
                lab("L_os_b")
                e(f"buffer_store_dwordx4 v[{ACC}:{ACC+3}], v{vL16}, s[{sWS}:{sWS+3}], s77 offen {SP}")
                lab("L_os_d")
                vm.append(None)
        elif t == "s":
            if i == 20: progress(j + 1)
    setup_done = False
    for j, op in enumerate(ops):
        Wc = W1 if (W2 is None or op[0] not in "so") else W2
        if WK and op[0] == "K": Wc = WK
        if WV and op[0] == "V": Wc = WV
        if WB and pos[("V", 63)] in processed: Wc = WB
        needs_gap = pre_issue(op)
        newly = []
        def big(x): return (not BIGW) or (x is not None and ops[x][0] not in ("xq", "xw"))
        if sum(big(x) for x in vm[done[0]:]) >= Wc and big(j):
            if not setup_done:
                late_setup(); setup_done = True
            bi = [k for k in range(done[0], len(vm)) if big(vm[k])]
            nd = bi[len(bi) - Wc] + 1
            e(f"s_waitcnt vmcnt({len(vm)-nd})")
            newly = [x for x in vm[done[0]:nd] if x is not None]; done[0] = nd
        elif needs_gap:
            e("s_nop 0")
        for x in newly[:-1]:
            process_a(x); process_b(x)
            if ops[x][0] in "qwV": e("s_nop 0")
        if newly:
            last = newly[-1]
            urgent = ops[last] in (("V", 63), ("q", 17))
            process_a(last)
            if urgent: process_b(last)
        issue(j); vm.append(j)
        if newly and not urgent: process_b(last)
    stamp(5)
    while done[0] < len(vm):
        x = vm[done[0]]
        rest = [y for y in vm[done[0]:] if y is not None and (ops[y][0] not in "so" or ops[y] == ("s", 20))]
        if not rest:
            e(f"ds_read_b32 v{vT0}, v{vZ} offset:{L_CF}")
            e("s_waitcnt lgkmcnt(0)")
            e(f"v_cmp_ne_u32 vcc, 1, v{vT0}")
            e("s_cbranch_vccz L_ld_end")
            send_b("L_ld_end")
            e("s_waitcnt vmcnt(0)"); done[0] = len(vm); break
        k = vm.index(rest[0])
        e(f"s_waitcnt vmcnt({len(vm)-k-1})")
        done[0] = k + 1
        e("s_nop 0")
        process_a(rest[0]); process_b(rest[0])
    if BAR: e("s_barrier")
    else: progress(PR_ALL)
    stamp(6)
    e("s_branch L_finb4" if stamps else "s_endpgm")

    lab("L_pwave")
    e("s_setprio 2")
    e("s_waitcnt lgkmcnt(0)")
    e(f"s_load_dword s{sTag}, s[32:33], {WSB}")
    srd(sWS, 32, 536870912)
    consts()
    e(f"s_lshl_b32 s76, s{sH}, 12")
    e(f"s_add_u32 s76, s76, {QP}")
    e("s_xor_b32 s39, s76, 0x1000")
    e(f"v_lshlrev_b32 v{vT0}, 7, v{vG}")
    e(f"v_lshl_add_u32 v{vT0}, v{vJ}, 4, v{vT0}")
    e(f"v_and_b32 v{vT1}, 8, v{vLane}")
    e(f"v_add_u32 v{vA0}, v{vT0}, v{vT1}")
    vG_, vSA, vGA, vGS, vL32, vL256 = 17, 19, 20, 21, 22, 23
    e(f"v_lshrrev_b32 v{vT0}, 5, v{vLane}")
    e(f"v_and_b32 v{vT2}, 3, v{vLane}")
    e(f"v_lshlrev_b32 v{vT1}, 6, v{vT0}")
    e(f"v_lshl_add_u32 v{vSA}, v{vT2}, 4, v{vT1}")
    e(f"v_lshrrev_b32 v{vT1}, 2, v{vLane}")
    e(f"v_mul_u32_u24 v{vT1}, 1152, v{vT1}")
    e(f"v_lshl_add_u32 v{vGS}, v{vT2}, 4, v{vT1}")
    e(f"v_and_b32 v{vT3}, 1, v{vLane}")
    e(f"v_lshl_add_u32 v{vGA}, v{vT3}, 4, v{vT1}")
    e(f"v_bfe_u32 v{vT0}, v{vLane}, 1, 1")
    e(f"v_lshl_add_u32 v{vGA}, v{vT0}, 8, v{vGA}")
    e(f"v_lshl_add_u32 v{vA1}, v{vT0}, 2, v{vG}")
    e(f"v_lshl_add_u32 v{vA1}, v{vT3}, 3, v{vA1}")
    e(f"v_lshlrev_b32 v{vA1}, 1, v{vA1}")
    e(f"v_lshlrev_b32 v{vL32}, 5, v{vLane}")
    e(f"v_lshlrev_b32 v{vL256}, 8, v{vLane}")
    e(f"s_mul_i32 s75, s{sH}, 18432")
    e(f"s_add_u32 s75, s75, {OP}")
    e(f"s_mul_i32 s77, s{sS}, 1152")
    e("s_add_u32 s77, s77, s75")
    e(f"s_lshr_b32 s74, s{sS}, 3")
    e("s_lshl_b32 s78, s74, 9")
    e(f"s_and_b32 s65, s{sS}, 7")
    e("s_lshl_b32 s65, s65, 5")
    e("s_add_u32 s78, s78, s65")
    vOwn = 18
    e(f"v_sub_u32 v{vOwn}, v{vGA}, v{vT1}")
    e(f"v_add_u32 v{vOwn}, s78, v{vOwn}")
    e(f"s_lshl_b32 s65, s{sS}, 2")
    e("s_lshl_b64 s[40:41], 15, s65")
    e("s_add_u32 s78, s78, s75")
    e("s_lshl_b32 s74, s74, 6")
    e("s_add_u32 s74, s74, s75")
    e("s_add_u32 s74, s74, 1024")
    for r in range(4): e(f"v_mov_b32 v{ACC+r}, 0")
    e("s_mov_b64 exec, 0xff")
    e(f"buffer_store_dwordx4 v[{ACC}:{ACC+3}], v{vL16}, s[{sWS}:{sWS+3}], s77 offen offset:1024")
    e("s_mov_b64 exec, -1")
    xid_setup()
    e("s_waitcnt lgkmcnt(0)")
    tagsetup()
    e("s_barrier")
    stamp(1)
    N = 32
    QR = [96, 100, 104, 108]
    mpoll("L_q", QR, 66, 44, lambda k, r: e(f"buffer_load_dwordx4 v[{r}:{r+3}], v{vL16}, s[{sWS}:{sWS+3}], s76 offen offset:{1024*k} {LP}"), QD, switch=[76])
    for k in range(4): mask4(128 + 4 * k, QR[k], "0xfffff000")
    pkadd(N, 128, 132); pkadd(N + 4, 136, 140)
    stamp(3)
    pkadd(N, N, N + 4)
    e(f"v_cvt_pk_bf16_f32 v{N+4}, v{N}, v{N+1}")
    e(f"v_cvt_pk_bf16_f32 v{N+5}, v{N+2}, v{N+3}")
    e(f"v_mov_b32 v{vT1}, 1")
    e(f"ds_write_b64 v{vA0}, v[{N+4}:{N+5}] offset:{L_Q}")
    flagset(L_QF, vT1)
    SB = 120
    e(f"v_not_b32 v{SB}, v{vTag}")
    e("s_mov_b64 exec, 0xffff")
    e(f"buffer_load_dwordx4 v[{SB}:{SB+3}], v{vL256}, s[{sWS}:{sWS+3}], s39 offen {LP}")
    e("s_mov_b64 exec, -1")
    ST = 40; FA = 44
    for k in range(4): e(f"v_xor_b32 v{FA+k}, v{QR[k]+3}, v{vXid}")
    e(f"v_or3_b32 v{FA}, v{FA}, v{FA+1}, v{FA+2}")
    e(f"v_or_b32 v{FA}, v{FA}, v{FA+3}")
    e(f"v_and_b32 v{FA}, s7, v{FA}")
    e(f"v_cmp_ne_u32 vcc, 0, v{FA}")
    e("s_cmp_lg_u64 vcc, 0" if not abl else "s_cmp_lg_u32 0, 0")
    e(f"s_cselect_b32 s38, {DOB}, {DOB if FORCEB else 0}")
    e(f"s_cselect_b32 s37, 2, {2 if FORCEB else 1}")
    e("s_add_u32 s74, s74, s38")
    e("s_add_u32 s77, s77, s38")
    e("s_add_u32 s78, s78, s38")
    e(f"v_mov_b32 v{vT2}, s37")
    e(f"v_mov_b32 v{vT3}, {f32(CS)}")
    S = 48
    def sextra():
        e(f"ds_read_b128 v[{S}:{S+3}], v{vL32} offset:{L_S}")
        e(f"ds_read_b128 v[{S+4}:{S+7}], v{vL32} offset:{L_S+16}")
    ldsspin("L_c2", vZ, L_C2, "9", sleep=1, extra=sextra)
    stamp(4)
    M = 62; l = 61
    e(f"v_max3_f32 v{M}, v{S}, v{S+1}, v{S+2}")
    e(f"v_max3_f32 v{M+1}, v{S+3}, v{S+4}, v{S+5}")
    e(f"v_max3_f32 v{M}, v{M}, v{S+6}, v{S+7}")
    e(f"v_max_f32 v{M}, v{M}, v{M+1}")
    for sh in (8, 4, 2, 1):
        e("s_nop 1")
        e(f"v_max_f32_dpp v{M}, v{M}, v{M} row_ror:{sh} {DPP}")
    xrow_op("v_max_f32", M, M + 1, only16=True)
    e(f"v_mul_f32 v{M}, v{vT3}, v{M}")
    e(f"v_and_b32 v{M}, 0xffffff00, v{M}")
    for k in range(8): e(f"v_fma_f32 v{S+k}, v{S+k}, v{vT3}, -v{M}")
    for k in range(8): e(f"v_exp_f32 v{S+k}, v{S+k}")
    for k in range(4): e(f"v_cvt_pk_bf16_f32 v{FA+k}, v{S+2*k}, v{S+2*k+1}")
    e(f"ds_write_b128 v{vL16}, v[{FA}:{FA+3}] offset:{L_P}")
    flagset(L_PF, vT2)
    stamp(5)
    e(f"ds_read_b32 v{vG_}, v{vZ} offset:{L_G}")
    pkadd(S, S, S + 4)
    e(f"v_pk_add_f32 v[{S}:{S+1}], v[{S}:{S+1}], v[{S+2}:{S+3}]")
    e(f"v_add_f32 v{S}, v{S}, v{S+1}")
    for sh in (8, 4, 2, 1):
        e("s_nop 1")
        e(f"v_add_f32_dpp v{S}, v{S}, v{S} row_ror:{sh} {DPP}")
    xrow_op("v_add_f32", S, S + 1, only16=True)
    e(f"v_perm_b32 v{ST}, v{M}, v{vTag}, s{sTS}")
    e(f"v_perm_b32 v{ST+1}, v{S}, v{vTag}, s{sTS+1}")
    e(f"v_perm_b32 v{ST+2}, v{ST}, v{vTag}, s{sTS+2}")
    e(f"v_perm_b32 v{ST+3}, v{ST}, v{vTag}, s{sTS+3}")
    e("s_mov_b32 exec_lo, 0xf")
    e("s_mov_b32 exec_hi, 0xf")
    e("s_cmp_eq_u32 s38, 0")
    e("s_cbranch_scc0 L_ss_b")
    e(f"buffer_store_dwordx4 v[{ST}:{ST+3}], v{vSA}, s[{sWS}:{sWS+3}], s77 offen offset:1024")
    e("s_branch L_ss_d")
    lab("L_ss_b")
    e(f"buffer_store_dwordx4 v[{ST}:{ST+3}], v{vSA}, s[{sWS}:{sWS+3}], s77 offen offset:1024 {SP}")
    lab("L_ss_d")
    e("s_mov_b64 exec, 0xffff")
    e("s_cmp_lg_u32 s38, 0")
    e("s_cbranch_scc1 L_sib_fail")
    e("s_mov_b64 s[66:67], 0xffff")
    mpoll("L_sib", [SB], 66, 64, lambda k, r: e(f"buffer_load_dwordx4 v[{r}:{r+3}], v{vL256}, s[{sWS}:{sWS+3}], s39 offen {LP}"),
          (0, 4, 3), base="0xffff", init=False, precheck=True, limit=4, fail="L_sib_fail")
    e(f"v_xor_b32 v{FA}, v{SB+3}, v{vXid}")
    e(f"v_and_b32 v{FA}, s7, v{FA}")
    e(f"v_cmp_ne_u32 vcc, 0, v{FA}")
    if not abl: e("s_cbranch_vccnz L_sib_fail")
    flagset(L_CF, vT1)
    lab("L_sib_fail")
    e("s_mov_b64 exec, -1")
    SR = 112; OR_ = 116; O2 = 56
    mpoll("L_st", [SR], 66, 64, lambda k, r: e(f"buffer_load_dwordx4 v[{r}:{r+3}], v{vGS}, s[{sWS}:{sWS+3}], s74 offen {LP}"), SD)
    e(f"v_and_b32 v{FA}, 0xffffff00, v{SR}")
    e(f"v_and_b32 v{FA+1}, 0xffffff00, v{SR+1}")
    e("s_nop 0")
    e(f"v_max_f32_dpp v{M}, v{FA}, v{FA} row_ror:8 {DPP}")
    e("s_nop 1")
    e(f"v_max_f32_dpp v{M}, v{M}, v{M} row_ror:4 {DPP}")
    xrow_op("v_max_f32", M, vT0)
    e(f"v_sub_f32 v{M}, v{FA}, v{M}")
    e(f"v_exp_f32 v{M}, v{M}")
    e("s_waitcnt lgkmcnt(0)")
    e(f"v_mul_f32 v{l}, v{FA+1}, v{M}")
    for sh in (8, 4):
        e("s_nop 1")
        e(f"v_add_f32_dpp v{l}, v{l}, v{l} row_ror:{sh} {DPP}")
    xrow_op("v_add_f32", l, vT0)
    e(f"v_rcp_f32 v{l}, v{l}")
    e(f"v_mul_f32 v{M}, v{M}, v{vG_}")
    e(f"v_mul_f32 v{M}, v{M}, v{l}")
    stamp(2)
    e(f"s_movk_i32 s66, {PR_V0 + OSTART + 1}")
    ldsspin("L_ow", vL4, L_PR, "s66", sleep=2)
    if not OWN:
        mpoll("L_o", [OR_], 68, 64, lambda k, r: e(f"buffer_load_dwordx4 v[{r}:{r+3}], v{vGA}, s[{sWS}:{sWS+3}], s78 offen {LP}"), OD)
    else:
        mpoll_init([OR_], 68)
        e("s_mov_b32 s79, 0")
        lab("L_o_loop")
        e("s_andn2_b64 exec, s[68:69], s[40:41]")
        e("s_cbranch_execz L_o_s")
        e(f"buffer_load_dwordx4 v[{OR_}:{OR_+3}], v{vGA}, s[{sWS}:{sWS+3}], s78 offen {LP}")
        lab("L_o_s")
        for c in range(OD[2] + 1):
            if c == OD[2]: e(f"s_waitcnt vmcnt({OD[3]-1})")
            e("s_mov_b64 exec, s[40:41]")
            e(f"ds_read_b128 v[{OR_}:{OR_+3}], v{vOwn} offset:{L_S}")
            e("s_mov_b64 exec, -1")
            if OD[1] > 1 and c < OD[2]: e(f"s_sleep {OD[1]-1}")
            e("s_waitcnt lgkmcnt(0)")
            mpoll_check([OR_], 68, 64, "L_o_done")
        e("s_add_u32 s79, s79, 1")
        e(f"s_cmp_lt_u32 s79, {SPIN_MAX*4}")
        e("s_cbranch_scc1 L_o_loop")
        lab("L_o_done")
    stamp(6)
    mask4(O2, OR_)
    e(f"v_pk_mul_f32 v[{O2}:{O2+1}], v[{O2}:{O2+1}], v[{M}:{M+1}] op_sel:[0,0] op_sel_hi:[1,0]")
    e(f"v_pk_mul_f32 v[{O2+2}:{O2+3}], v[{O2+2}:{O2+3}], v[{M}:{M+1}] op_sel:[0,0] op_sel_hi:[1,0]")
    red16(O2)
    e(f"v_cvt_pk_bf16_f32 v{O2}, v{O2}, v{O2}")
    e("s_mov_b32 exec_lo, 0x000f000f")
    e("s_mov_b32 exec_hi, 0x000f000f")
    e(f"ds_write_b16 v{vA1}, v{O2} offset:{L_O}")
    if BAR:
        e("s_waitcnt lgkmcnt(0)")
        e("s_barrier")
        e("s_mov_b64 exec, -1")
    else:
        flagset(L_OF, vT1)
    stamp(7)
    if WBL is not None:
        e(f"s_cmp_ge_u32 s5, {WBL}")
        e("s_cbranch_scc1 L_nowb")
        e("buffer_wbl2 sc1")
        lab("L_nowb")
    e("s_branch L_finb4" if stamps else "s_endpgm")

    lab("L_kv")
    TMP = 28
    VD = 32; LD = 64; KF = 84; QF = 116; S = 132; KA = 140
    vWO, vW2, vMX2, vHA, vGg, vB2, vSW, vW2b = 144, 145, 146, 147, 148, 149, 150, 151
    HV = 152; vVA = 156; vOne = 157; vOut = 159
    sKW = 37
    e(f"s_sub_u32 s{sKW}, s{sW}, 2")
    e(f"s_cmp_eq_u32 s{sW}, 10")
    e("s_cbranch_scc1 L_w10")
    def common_setup():
        e("s_waitcnt lgkmcnt(0)")
        e(f"s_load_dword s{sTag}, s[32:33], {WSB}")
        srd(sWS, 32, 536870912)
        selsetup()
        e(f"v_lshl_add_u32 v{vT0}, v{vG}, 3, v{vJ}")
        e(f"v_lshrrev_b32 v{vT1}, 2, v{vT0}")
        e(f"v_lshlrev_b32 v{vT1}, 14, v{vT1}")
        e(f"v_and_b32 v{vT0}, 3, v{vT0}")
        e(f"v_lshl_add_u32 v{vA0}, v{vT0}, 4, v{vT1}")
        e("s_lshl_b32 s74, s4, 6")
        e(f"s_lshl_b32 s75, s{sKW}, 16")
        e("s_add_u32 s74, s74, s75")
        e(f"s_add_u32 s74, s74, {FP}")
        if FPT == "w":
            for r in range(4): e(f"v_mov_b32 v{ACC+r}, 0")
            hstore(ACC, 74, vA0, SP)
        if FPT == "r":
            e("s_mov_b64 exec, 0x00ff00ff")
            e(f"buffer_load_dwordx4 v[{TMP}:{TMP+3}], v{vA0}, s[{sWS}:{sWS+3}], s74 offen sc1")
            e("s_mov_b64 exec, -1")
        e(f"s_lshl_b32 s75, s{sKW}, 7")
        e(f"v_lshl_add_u32 v{vT0}, v{vJ}, 4, s75")
        e(f"v_mul_u32_u24 v{vWO}, {2*1152}, v{vSub}")
        e(f"v_add_u32 v{vWO}, v{vWO}, v{vT0}")
        e(f"v_mul_u32_u24 v{vW2}, 1152, v{vSub}")
        e(f"v_add_u32 v{vW2}, v{vW2}, v{vT0}")
        e(f"v_min_u32 v{vT1}, 1, v{vSub}")
        e(f"v_mul_u32_u24 v{vW2b}, 1152, v{vT1}")
        e(f"v_add_u32 v{vW2b}, v{vW2b}, v{vT0}")
        e("s_and_b32 s75, s4, 1")
        e("s_lshl_b32 s75, s75, 3")
        e(f"v_lshl_add_u32 v{vHA}, v{vSub}, 2, s75")
        e(f"v_lshlrev_b32 v{vA1}, 2, v{vSub}")
        srd(sC, 30, 1152)
        srd(sD, 26, 1152)
        e("s_lshr_b32 s75, s2, 2"); e("s_lshl_b32 s75, s75, 7")
        e("s_and_b32 s76, s2, 1"); e("s_lshl_b32 s76, s76, 6"); e("s_add_u32 s75, s75, s76")
        e("s_and_b32 s76, s2, 2"); e("s_lshl_b32 s76, s76, 2"); e("s_add_u32 s77, s75, s76")
        e(f"v_and_b32 v{vT0}, 3, v{vLane}")
        e(f"v_lshl_add_u32 v{vT2}, v{vG}, 2, v{vT0}")
        e(f"v_lshlrev_b32 v{vT0}, 4, v{vT0}")
        e(f"v_bfe_u32 v{vT1}, v{vLane}, 2, 2")
        e(f"v_lshl_add_u32 v{vOut}, v{vT1}, 1, v{vT0}")
        e("s_lshl_b32 s76, s2, 14")
        e(f"s_lshl_b32 s75, s{sKW}, 11")
        e("s_add_u32 s76, s76, s75")
        e(f"s_add_u32 s76, s76, {FP}")
        e(f"s_lshl_b32 s75, s{sKW}, 2")
        e(f"v_lshl_add_u32 v{vMX2}, v{vT2}, 5, s75")
        e(f"v_lshlrev_b32 v{vVA}, 5, v{vN}")
        e(f"v_mov_b32 v{vOne}, 1")
        e("s_waitcnt lgkmcnt(0)")
        tagsetup()
    common_setup()
    e("s_cmp_ge_u32 s2, 36")
    e("s_cbranch_scc1 L_nored0")
    e(f"s_cmp_lg_u32 s{sW}, 2")
    e("s_cbranch_scc1 L_nored0")
    e(f"buffer_load_ushort v{vB2}, v{vOut}, s[{sD}:{sD+3}], s77 offen nt")
    e(f"buffer_load_ushort v{vT3}, v{vOut}, s[{sC}:{sC+3}], s77 offen nt")
    lab("L_nored0")
    e(f"s_lshl_b32 s38, s{sKW}, 12")
    e(f"s_add_u32 s38, s38, {L_K}")
    e(f"v_and_b32 v{vT0}, 3, v{vN}")
    e(f"v_lshrrev_b32 v{vT1}, 2, v{vN}")
    e(f"v_lshl_add_u32 v{vT0}, v{vT0}, 2, v{vT1}")
    e(f"v_xor_b32 v{vT1}, v{vG}, v{vN}")
    e(f"v_lshlrev_b32 v{vT1}, 4, v{vT1}")
    e(f"v_lshl_add_u32 v{vT0}, v{vT0}, 8, v{vT1}")
    e(f"v_add_u32 v{KA}, s38, v{vT0}")
    for k in range(1, 4): e(f"v_xor_b32 v{KA+k}, {64*k}, v{KA}")
    e(f"v_lshrrev_b32 v{vT0}, 3, v{vN}")
    e(f"v_lshlrev_b32 v{vT1}, 8, v{vT0}")
    e(f"v_lshl_add_u32 v{vT1}, v{vG}, 4, v{vT1}")
    e(f"s_lshl_b32 s66, s{sKW}, 4")
    e(f"v_lshl_add_u32 v{vSW}, v{vSub}, 8, s66")
    e(f"s_add_u32 s66, s75, {PR_K0 + 32 + 4}")
    e("s_barrier")
    def qextra():
        for k in range(4):
            e(f"ds_read_b128 v[{QF+4*k}:{QF+4*k+3}], v{vT1} offset:{L_Q+64*k}")
    ldsspin("L_qf", vZ, L_QF, "1", sleep=4, extra=qextra)
    stamp(4)
    ldsspin("L_kw", vL4, L_PR, "s66", sleep=1)
    for t in range(2):
        for k in range(4):
            r = KF + 16 * t + 4 * k
            e(f"ds_read_b128 v[{r}:{r+3}], v{KA+k} offset:{32768*t}")
    for t in range(2):
        for k in range(4):
            e(f"s_waitcnt lgkmcnt({7-4*t-k})")
            mfma(S + 4 * t, KF + 16 * t + 4 * k, QF + 4 * k, "0" if k == 0 else None)
    e("s_mov_b32 exec_lo, 0x01010101")
    e("s_mov_b32 exec_hi, 0x01010101")
    e(f"ds_write_b128 v{vSW}, v[{S}:{S+3}] offset:{L_S}")
    e("s_nop 4")
    e(f"ds_write_b128 v{vSW}, v[{S+4}:{S+7}] offset:{L_S+128}")
    e("s_mov_b64 exec, 1")
    e(f"ds_add_u32 v{vZ}, v{vOne} offset:{L_C2}")
    e("s_mov_b64 exec, -1")
    stamp(5)
    e("s_waitcnt vmcnt(0)")
    lab("L_tail")
    def hextra():
        for u in range(3):
            e(f"ds_read_b32 v{HV+u}, v{vHA} offset:{L_H+32*u}")
        e(f"ds_read_b32 v{vGg}, v{vZ} offset:{L_G}")
    ldsspin("L_hf", vZ, L_HF, "1", sleep=4, extra=hextra)
    e(f"v_cmp_gt_u32 vcc, 2, v{vSub}")
    e(f"v_sub_f32 v{vGg}, 1.0, v{vGg}")
    e("s_nop 0")
    e(f"v_cndmask_b32 v{HV+2}, 0, v{HV+2}, vcc")
    for u in range(3): e(f"v_mul_f32 v{HV+u}, v{HV+u}, v{vGg}")
    e(f"v_cvt_pk_bf16_f32 v{HV}, v{HV}, v{HV+1}")
    e(f"v_cvt_pk_bf16_f32 v{HV+1}, v{HV+2}, v{HV+2}")
    abuild(KF, HV, 0); abuild(KF + 4, HV, 1); abuild(KF + 8, HV + 1, 0)
    e(f"s_movk_i32 s66, {PR_W2}")
    e(f"s_movk_i32 s67, {PR_ALL}")
    mpoll_init([32, 36], 68)
    ldsspin("L_w2f", vL4, L_PR, "s66", sleep=4)
    e(f"ds_read_b128 v[{LD+8}:{LD+11}], v{vW2} offset:{L_W2}")
    e(f"ds_read_b128 v[{LD+12}:{LD+15}], v{vW2} offset:{L_W2+8*1152}")
    e(f"ds_read_b128 v[{LD+16}:{LD+19}], v{vW2b} offset:{L_W2+16*1152}")
    e("s_waitcnt lgkmcnt(0)")
    for u in range(3):
        mfma(ACC, KF + 4 * u, LD + 8 + 4 * u, "0" if u == 0 else None)
    stamp(6)
    if BAR:
        e("s_barrier")
        e(f"ds_read_b32 v{HV}, v{vA1} offset:{L_O}")
    else:
        e("s_mov_b32 s79, 0")
        lab("L_last")
        e(f"ds_read_b32 v{vT0}, v{vL4} offset:{L_PR}")
        e(f"ds_read_b32 v{vT1}, v{vZ} offset:{L_OF}")
        e(f"ds_read_b32 v{HV}, v{vA1} offset:{L_O}")
        e("s_waitcnt lgkmcnt(1)")
        e(f"v_mul_u32_u24 v{vT0}, v{vT0}, v{vT1}")
        e(f"v_cmp_gt_u32 vcc, s67, v{vT0}")
        e("s_cbranch_vccz L_last_d")
        if LS: e(f"s_sleep {LS}")
        e("s_add_u32 s79, s79, 1")
        e(f"s_cmp_lt_u32 s79, {SPIN_MAX*16}")
        e("s_cbranch_scc1 L_last")
        lab("L_last_d")
    e(f"ds_read_b128 v[{LD}:{LD+3}], v{vWO} offset:{L_WO}")
    e(f"ds_read_b128 v[{LD+4}:{LD+7}], v{vWO} offset:{L_WO+1152}")
    e("s_waitcnt lgkmcnt(2)")
    abuild(KF + 12, HV, 0)
    abuild(KF + 16, HV, 1)
    e("s_waitcnt lgkmcnt(0)")
    mfma(ACC, KF + 12, LD)
    mfma(ACC, KF + 16, LD + 4)
    stamp(7)
    e("s_nop 7")
    halfadd_tag(ACC, TMP)
    hstore(ACC, 74, vA0, FSP or SP)
    stamp(8)
    e("s_cmp_ge_u32 s2, 36")
    e("s_cbranch_scc1 L_fin")
    e(f"s_cmp_eq_u32 s{sW}, 10")
    e("s_cbranch_scc1 L_finb4" if stamps else "s_cbranch_scc1 L_fin")
    R = 84
    mpoll("L_f", [32, 36], 68, 88, lambda k, r: e(f"buffer_load_dwordx4 v[{r}:{r+3}], v{vL16}, s[{sWS}:{sWS+3}], s76 offen offset:{1024*k} {FLP or LP}"), FD, init=False)
    mask4(R, 32); mask4(R + 4, 36)
    pkadd(R, R, R + 4)
    stamp(2)
    red16(R)
    e("s_mov_b32 exec_lo, 0x000f000f")
    e("s_mov_b32 exec_hi, 0x000f000f")
    e(f"ds_write_b32 v{vMX2}, v{R} offset:{L_F}")
    e("s_mov_b64 exec, -1")
    e(f"v_lshlrev_b32 v{vB2}, 16, v{vB2}")
    e("s_waitcnt lgkmcnt(0)")
    e("s_barrier")
    e(f"s_cmp_eq_u32 s{sW}, 2")
    e("s_cbranch_scc0 L_fin")
    e(f"ds_read_b128 v[{R}:{R+3}], v{vVA} offset:{L_F}")
    e(f"ds_read_b128 v[{R+4}:{R+7}], v{vVA} offset:{L_F+16}")
    e("s_waitcnt lgkmcnt(0)")
    pkadd(R, R, R + 4)
    e(f"v_pk_add_f32 v[{R}:{R+1}], v[{R}:{R+1}], v[{R+2}:{R+3}]")
    e(f"v_add_f32 v{R}, v{R}, v{R+1}")
    e(f"v_fma_f32 v{R}, v{vB2}, v{vGg}, v{R}")
    e(f"v_cvt_pk_bf16_f32 v{R}, v{R}, v{R}")
    e("s_mov_b64 exec, 0xffff")
    e(f"buffer_store_short v{R}, v{vOut}, s[{sC}:{sC+3}], s77 offen {OSP}")
    e("s_cmp_eq_u32 s2, 0")
    e("s_cbranch_scc0 L_fin")
    e("s_mov_b64 exec, 1")
    e(f"s_mov_b32 s66, {WSB}")
    e(f"buffer_store_dword v{vTag}, v{vZ}, s[{sWS}:{sWS+3}], s66 offen")
    e("s_branch L_fin")

    lab("L_w10")
    e(f"v_lshlrev_b32 v{vT2}, 5, v{vLane}")
    e("s_waitcnt lgkmcnt(0)")
    B1 = VD + 24
    srd(sA, 8, 1152)
    srd(sB, 28, 1152)
    srd(sC, 22, 9216)
    e(f"buffer_load_dwordx4 v[{VD}:{VD+3}], v{vT2}, s[{sA}:{sA+3}], 0 offen {XP}")
    e(f"buffer_load_dwordx4 v[{VD+4}:{VD+7}], v{vT2}, s[{sA}:{sA+3}], 0 offen offset:16 {XP}")
    e(f"buffer_load_dwordx4 v[{VD+8}:{VD+11}], v{vT2}, s[{sB}:{sB+3}], 0 offen {XP}")
    e(f"buffer_load_dwordx4 v[{VD+12}:{VD+15}], v{vT2}, s[{sB}:{sB+3}], 0 offen offset:16 {XP}")
    e("s_mul_i32 s38, s4, 18")
    e("s_lshr_b32 s38, s38, 2")
    e("s_lshl_b32 s76, s38, 3")
    e(f"v_lshlrev_b32 v{vT0}, 3, v{vLane}")
    e("s_mov_b64 exec, 0x1f")
    e(f"buffer_load_dwordx2 v[{B1}:{B1+1}], v{vT0}, s[{sC}:{sC+3}], s76 offen nt")
    e(f"s_lshl_b32 s66, s{sH}, 23")
    e(f"s_add_u32 s66, s66, {28672*256}")
    e(f"s_lshl_b32 s67, s{sH}, 4")
    e(f"s_add_u32 s67, s67, s{sS}")
    e(f"s_mul_i32 s67, s67, {16*1152}")
    e(f"s_mul_i32 s68, s4, {18*1152}")
    srd(sA, 12, 134217728)
    srd(sB, 16, 4718592)
    srd(sC, 24, 5308416)
    srd(sD, 20, 5308416)
    e(f"v_lshlrev_b32 v{vT0}, 21, v{vLane}")
    e("s_mov_b64 exec, 1")
    e(f"buffer_load_dword v{VD+18}, v{vZ}, s[{sA}:{sA+3}], s66 offen nt")
    e(f"buffer_load_dword v{VD+19}, v{vZ}, s[{sB}:{sB+3}], s67 offen nt")
    e(f"buffer_load_dword v{VD+20}, v{vZ}, s[{sC}:{sC+3}], s68 offen nt")
    e("s_mov_b64 exec, 7")
    e(f"buffer_load_dword v{VD+21}, v{vT0}, s[{sD}:{sD+3}], 0 offen {XP}")
    e("s_mov_b64 exec, -1")
    common_setup()
    e("s_barrier")
    e(f"v_mov_b32 v{vGg}, 0")
    e(f"s_waitcnt vmcnt({6 if FPT else 5})")
    for k in range(8):
        e(f"v_dot2_f32_bf16 v{vGg}, v{VD+k}, v{VD+8+k}, v{vGg}")
    e("s_nop 2")
    for sh in (8, 4, 2, 1):
        e(f"v_add_f32_dpp v{vGg}, v{vGg}, v{vGg} row_ror:{sh} {DPP}")
        e("s_nop 1")
    xrow_op("v_add_f32", vGg, vT0)
    e(f"v_mul_f32 v{vGg}, {f32(-math.log2(math.e))}, v{vGg}")
    e(f"v_exp_f32 v{vGg}, v{vGg}")
    e("s_nop 0")
    e(f"v_add_f32 v{vGg}, 1.0, v{vGg}")
    e(f"v_rcp_f32 v{vGg}, v{vGg}")
    e("s_mov_b64 exec, 1")
    e(f"ds_write_b32 v{vZ}, v{vGg} offset:{L_G}")
    e(f"ds_add_u32 v{vZ}, v{vOne} offset:{L_C2}")
    e("s_mov_b64 exec, -1")
    stamp(1)
    HA = VD + 26
    e(f"v_add_u32 v{vT0}, s38, v{vLane}")
    e(f"v_lshrrev_b32 v{vT1}, 4, v{vT0}")
    e(f"v_lshlrev_b32 v{vT1}, 8, v{vT1}")
    e(f"v_and_b32 v{vT2}, 1, v{vT0}")
    e(f"v_lshl_add_u32 v{vT1}, v{vT2}, 7, v{vT1}")
    e(f"v_bfe_u32 v{vT2}, v{vT0}, 1, 3")
    e(f"v_lshl_add_u32 v{HA}, v{vT2}, 4, v{vT1}")
    e(f"s_mov_b32 s66, {HP}")
    e(f"s_mov_b32 s67, {HP+18432}")
    e(f"s_mov_b32 s68, {HP+2*18432}")
    e(f"s_movk_i32 s69, {PR_HPUB}")
    ldsspin("L_hp", vL4, L_PR, "s69", sleep=4)
    e("s_waitcnt vmcnt(0)")
    e("s_mov_b64 exec, 0x1f")
    H = 64
    e(f"v_lshlrev_b32 v{H+12}, 16, v{B1}")
    e(f"v_and_b32 v{H+13}, 0xffff0000, v{B1}")
    e(f"v_lshlrev_b32 v{H+14}, 16, v{B1+1}")
    e(f"v_and_b32 v{H+15}, 0xffff0000, v{B1+1}")
    mpoll("L_h", [116, 120, 124], 40, 40, lambda k, r: e(f"buffer_load_dwordx4 v[{r}:{r+3}], v{HA}, s[{sWS}:{sWS+3}], s{66+k} offen {LP}"), HD, base="0x1f", switch=[66, 67, 68])
    mask4(H, 116); mask4(H + 4, 120); mask4(H + 8, 124)
    pkadd(H, H, H + 4); pkadd(H + 8, H + 8, H + 12)
    stamp(3)
    pkadd(H, H, H + 8)
    c1 = -2.0 * math.sqrt(2.0 / math.pi) * math.log2(math.e)
    e(f"v_mov_b32 v{H+12}, {f32(c1)}")
    e(f"v_mov_b32 v{H+13}, {f32(c1 * 0.044715)}")
    for r in range(4): e(f"v_mul_f32 v{H+4+r}, v{H+r}, v{H+r}")
    for r in range(4): e(f"v_fma_f32 v{H+4+r}, v{H+4+r}, v{H+13}, v{H+12}")
    for r in range(4): e(f"v_mul_f32 v{H+4+r}, v{H+4+r}, v{H+r}")
    for r in range(4): e(f"v_exp_f32 v{H+4+r}, v{H+4+r}")
    for r in range(4): e(f"v_add_f32 v{H+4+r}, 1.0, v{H+4+r}")
    for r in range(4): e(f"v_rcp_f32 v{H+4+r}, v{H+4+r}")
    for r in range(4): e(f"v_mul_f32 v{H+r}, v{H+r}, v{H+4+r}")
    e(f"ds_write_b128 v{vL16}, v[{H}:{H+3}] offset:{L_H}")
    flagset(L_HF, vOne)
    e("s_branch L_tail")

    if stamps:
        lab("L_finb4")
        e("s_cmp_ge_u32 s2, 36")
        e("s_cbranch_scc1 L_fin")
        e("s_barrier")
    lab("L_fin")
    if stamps:
        e("s_mov_b64 exec, -1")
        e("s_waitcnt vmcnt(0)")
        stamp(9)
        e("s_waitcnt lgkmcnt(0)")
        e("s_sleep 100")
        for i in range(20): e(f"v_mov_b32 v{32+i}, s{80+i}")
        e(f"s_mul_i32 s66, s2, {NW}")
        e(f"s_add_u32 s66, s66, s{sW}")
        e("s_mul_i32 s66, s66, 80")
        e(f"s_add_u32 s66, s66, {STAMP}")
        e("s_mov_b64 exec, 1")
        for i in range(5):
            e(f"buffer_store_dwordx4 v[{32+4*i}:{35+4*i}], v{vZ}, s[{sWS}:{sWS+3}], s66 offen offset:{16*i}")
    lab("L_end")
    e("s_endpgm")
    lab("L_codeend")
    txt = header(256, NW * 64, LDS_BYTES) + "\n".join(L) + "\n" + footer(168, 100)
    open(out, "w").write(txt)

if __name__ == "__main__":
    if len(sys.argv) > 1:
        for spec in sys.argv[1:]:
            name, kw = spec.split("=", 1)
            kw = eval("dict(%s)" % kw)
            gen(name + "s.s", stamps=True, **kw)
            gen(name + ".s", stamps=False, **kw)
    else:
        gen("k12.s", stamps=False)
        gen("k12s.s", stamps=True)
```

```python
import sys, math, struct
from gen_common import *

def f32(x):
    return "0x%08x" % struct.unpack("<I", struct.pack("<f", x))[0]

STAMP = 0x10000000
L_Q = 0; L_H = 640; L_O = 768; L_G = 832
L_FL = 848
L_QF, L_HF, L_C2, L_PF, L_CF, L_OF = L_FL, L_FL + 4, L_FL + 8, L_FL + 12, L_FL + 16, L_FL + 20
L_F = 1152
L_PR = 1792
L_S = 2048
L_P = 4096
L_WO = 5120
L_W2 = L_WO + 18432
L_K = 45056
LDS_BYTES = L_K + 65536
NW = 11
SPIN_MAX = 200000

DOC = """; Design (generated by a private script; one persistent launch, 256 workgroups = 1 per CU, 11 waves each):
;   wave 1  : gathers q, softmax (true max), split-combine of the attention output.
"""

def gen(out, stamps=False, order="qKwVL", W1=24, HASH=0x9E3779B1, QD=(25, 0, 0, 1), HD=(50, 0, 0, 1), OD=(0, 2, 3, 3), FD=(12, 1, 4),
        LP="sc1", SP="sc1", WSB=0, XP="", SD=(30, 0, 0, 1), NA=12, FORCEB=False, DBG=None, PT=60, WB=None, WK=None, WV=None, IDLE=True, CQX=0, IL=None, OSTART=63, W2=32, LS=1, FPT=None, FSP=None, FLP=None, abl="", BIGW=False, EARLYP=True, EARLYW=True, OWN=False, WBL=None, OSP="", BAR=True, LIGHT=True, CLEAN=None):
    QP = WSB + 0x10000; HP = WSB + 0x20000; DAB = 0x40000
    OP = WSB + 0x80000; DOB = 0x48000; FP = WSB + 0x110000
    L = []
    def e(s):
        if "nostore" in abl and s.startswith("buffer_store_dwordx4") and "s66 offen offset" not in s:
            s = s.replace(" offen", " offen").replace("s[56:59]", "s[96:99]")
        if "nofpub" in abl and s.startswith("buffer_store_dwordx4") and "s74 offen" in s:
            s = s.replace("s[56:59]", "s[96:99]")
        L.append("    " + s)
    def lab(s): L.append(s + ":")
    def stamp(i):
        if stamps and not (abl and i >= 8): e(f"s_memrealtime s[{80+2*i}:{81+2*i}]")
    def srd(d, b, n):
        if d == 56 and abl:
            e(f"s_mov_b64 s[96:97], s[{b}:{b+1}]"); e("s_mov_b32 s98, 0"); e("s_mov_b32 s99, 0x20000")
        e(f"s_mov_b64 s[{d}:{d+1}], s[{b}:{b+1}]"); e(f"s_mov_b32 s{d+2}, {n}"); e(f"s_mov_b32 s{d+3}, 0x20000")
    vXid, vL4, vLane, vN, vG, vSub, vJ, vTag, vL16, vT0, vT1, vT2, vT3, vA0, vA1, vZ = range(16)
    SEL = 16; ACC = 24
    sW, sH, sS, sTag = 3, 35, 36, 34
    sA, sB, sC, sD, sWS = 40, 44, 48, 52, 56
    sTS = 60; sCK = 64
    def tagsetup():
        e(f"s_add_u32 s{sTag}, s{sTag}, 0x01010101")
        e(f"s_cmp_eq_u32 s{sTag}, 0")
        e(f"s_cselect_b32 s{sTag}, 0x01010101, s{sTag}")
        e(f"v_mov_b32 v{vTag}, s{sTag}")
    def tag4(dst, src):
        for k in range(4):
            e(f"v_perm_b32 v{dst+k}, v{src+k}, v{vTag}, s{sTS+k}")
    def mask4(dst, src, last="0xffffff00"):
        for k in range(4):
            e(f"v_and_b32 v{dst+k}, {last if k == 3 else '0xffffff00'}, v{src+k}")
    def check4(src, dst):
        e(f"v_perm_b32 v{dst}, v{src+1}, v{src}, s{sCK}")
        e(f"v_perm_b32 v{dst+1}, v{src+3}, v{src+2}, s{sCK}")
        e(f"v_lshl_or_b32 v{dst}, v{dst+1}, 16, v{dst}")
    def mpoll_init(regs, msk, base="-1"):
        for k, r in enumerate(regs):
            e(f"v_not_b32 v{r}, v{vTag}")
            e(f"s_mov_b64 s[{msk+2*k}:{msk+2*k+1}], {base}")
    def mpoll_issue(name, regs, msk, issue, base="-1"):
        for k, r in enumerate(regs):
            e(f"s_mov_b64 exec, s[{msk+2*k}:{msk+2*k+1}]")
            if len(regs) > 1: e(f"s_cbranch_execz {name}_s{k}")
            issue(k, r)
            if len(regs) > 1: lab(f"{name}_s{k}")
        e(f"s_mov_b64 exec, {base}")
    def mpoll_check(regs, msk, tmp, done):
        for k, r in enumerate(regs):
            check4(r, tmp + 2 * k)
        for k, r in enumerate(regs):
            e(f"v_cmp_ne_u32 s[{msk+2*k}:{msk+2*k+1}], v{tmp+2*k}, v{vTag}")
        if len(regs) == 1:
            e(f"s_cmp_eq_u64 s[{msk}:{msk+1}], 0")
            e(f"s_cbranch_scc1 {done}")
        else:
            e(f"s_or_b64 vcc, s[{msk}:{msk+1}], s[{msk+2}:{msk+3}]")
            for k in range(2, len(regs)):
                e(f"s_or_b64 vcc, vcc, s[{msk+2*k}:{msk+2*k+1}]")
            e(f"s_cbranch_scc0 {done}")
    def mpoll(name, regs, msk, tmp, issue, D, base="-1", cnt=79, init=True, precheck=False, switch=None, limit=SPIN_MAX*4, fail=None):
        if "nopoll" in abl or ("no" + name + ",") in abl: return
        if init: mpoll_init(regs, msk, base)
        e(f"s_mov_b32 s{cnt}, 0")
        if precheck: mpoll_check(regs, msk, tmp, f"{name}_done")
        if D[0]: e(f"s_sleep {D[0]}")
        lab(f"{name}_loop")
        mpoll_issue(name, regs, msk, issue, base)
        for c in range(D[2]):
            if D[1]: e(f"s_sleep {D[1]}")
            mpoll_check(regs, msk, tmp, f"{name}_done")
        if len(D) > 3:
            e(f"s_waitcnt vmcnt({(D[3]-1)*len(regs)})")
            mpoll_check(regs, msk, tmp, f"{name}_done")
        else:
            e("s_waitcnt vmcnt(24)")
        e(f"s_add_u32 s{cnt}, s{cnt}, 1")
        if switch:
            e(f"s_cmp_lt_u32 s{cnt}, {NA}")
            e(f"s_cbranch_scc1 {name}_loop")
            e("s_waitcnt vmcnt(0)")
            mpoll_check(regs, msk, tmp, f"{name}_done")
            for r in switch: e(f"s_xor_b32 s{r}, s{r}, {DAB}")
        e(f"s_cmp_lt_u32 s{cnt}, {limit}")
        e(f"s_cbranch_scc1 {name}_loop")
        if fail: e(f"s_branch {fail}")
        lab(f"{name}_done")
    def ldsspin(name, addr, off, thr, cnt=79, sleep=1, extra=None, hook=None):
        e(f"s_mov_b32 s{cnt}, 0")
        lab(name)
        e(f"ds_read_b32 v{vT0}, v{addr} offset:{off}")
        if extra: extra()
        e("s_waitcnt lgkmcnt(0)")
        e(f"v_cmp_gt_u32 vcc, {thr}, v{vT0}")
        e(f"s_cbranch_vccz {name}_d")
        if sleep: e(f"s_sleep {sleep}")
        e(f"s_add_u32 s{cnt}, s{cnt}, 1")
        if hook: hook()
        e(f"s_cmp_lt_u32 s{cnt}, {SPIN_MAX*16}")
        e(f"s_cbranch_scc1 {name}")
        lab(name + "_d")
    def consts():
        for w in range(4): e(f"s_mov_b32 s{sTS+w}, 0x0706050{w}")
        e(f"s_mov_b32 s{sCK}, 0x0c0c0400")
    def selsetup():
        e(f"v_and_b32 v{vT0}, 1, v{vLane}")
        e(f"v_cmp_eq_u32 vcc, 1, v{vT0}")
        e(f"v_mov_b32 v{vT1}, 0x0c0c0100"); e(f"v_mov_b32 v{vT2}, 0x01000c0c")
        e(f"v_cndmask_b32 v{vT1}, v{vT1}, v{vT2}, vcc")
        e(f"v_mov_b32 v{vT2}, 0x0c0c0302"); e(f"v_mov_b32 v{vT3}, 0x03020c0c")
        e(f"v_cndmask_b32 v{vT2}, v{vT2}, v{vT3}, vcc")
        e(f"v_mov_b32 v{vT3}, 0x0c0c0c0c")
        e(f"v_lshrrev_b32 v{vT0}, 1, v{vJ}")
        for w in range(4):
            e(f"v_cmp_eq_u32 vcc, {w}, v{vT0}")
            e(f"s_mov_b32 s{sTS+w}, 0x0706050{w}")
            e("s_nop 0")
            e(f"v_cndmask_b32 v{SEL+w}, v{vT3}, v{vT1}, vcc")
            e(f"v_cndmask_b32 v{SEL+4+w}, v{vT3}, v{vT2}, vcc")
        e(f"s_mov_b32 s{sCK}, 0x0c0c0400")
    def abuild(dst, src, par):
        for w in range(4):
            e(f"v_perm_b32 v{dst+w}, v{src}, v{src}, v{SEL+4*par+w}")
    def mfma(d, a, b, c=None):
        cs = f"v[{d}:{d+3}]" if c is None else c
        e(f"v_mfma_f32_16x16x32_bf16 v[{d}:{d+3}], v[{a}:{a+3}], v[{b}:{b+3}], {cs}")
    DPP = "row_mask:0xf bank_mask:0xf"
    def halfadd_tag(acc, tmp):
        for r in range(4):
            e(f"v_permlane32_swap_b32 v{acc+r}, v{tmp+r}")
        for r in range(4):
            e(f"v_add_f32_dpp v{acc+r}, v{tmp+r}, v{acc+r} row_ror:8 {DPP}")
        tag4(acc, acc)
    def hstore(acc, soff, voff, pol):
        e("s_mov_b64 exec, 0x00ff00ff")
        e(f"buffer_store_dwordx4 v[{acc}:{acc+3}], v{voff}, s[{sWS}:{sWS+3}], s{soff} offen {pol}")
        e("s_mov_b64 exec, -1")
    def xid_setup():
        e("s_getreg_b32 s6, hwreg(HW_REG_XCC_ID)")
        e("s_and_b32 s6, s6, 15")
        e("s_lshl_b32 s6, s6, 8")
        e("s_movk_i32 s7, 0xf00")
        e(f"v_mov_b32 v{vXid}, s6")
    def xrow_op(op, x, t, only16=False):
        e(f"v_mov_b32 v{t}, v{x}")
        e("s_nop 1")
        e(f"v_permlane16_swap_b32 v{t}, v{x}")
        e(f"{op} v{x}, v{x}, v{t}")
        if only16: return
        e(f"v_mov_b32 v{t}, v{x}")
        e("s_nop 1")
        e(f"v_permlane32_swap_b32 v{t}, v{x}")
        e(f"{op} v{x}, v{x}, v{t}")
    def pkadd(d, a, b):
        e(f"v_pk_add_f32 v[{d}:{d+1}], v[{a}:{a+1}], v[{b}:{b+1}]")
        e(f"v_pk_add_f32 v[{d+2}:{d+3}], v[{a+2}:{a+3}], v[{b+2}:{b+3}]")
    def red16(R):
        e("s_nop 1")
        e(f"v_permlane32_swap_b32 v{R}, v{R+2}")
        e(f"v_permlane32_swap_b32 v{R+1}, v{R+3}")
        e(f"v_pk_add_f32 v[{R}:{R+1}], v[{R}:{R+1}], v[{R+2}:{R+3}]")
        e("s_nop 1")
        e(f"v_permlane16_swap_b32 v{R}, v{R+1}")
        e(f"v_add_f32 v{R}, v{R}, v{R+1}")
        for sh in (8, 4):
            e("s_nop 1")
            e(f"v_add_f32_dpp v{R}, v{R}, v{R} row_ror:{sh} {DPP}")
    def flagset(off, vreg):
        e("s_mov_b64 exec, 1")
        e(f"ds_write_b32 v{vZ}, v{vreg} offset:{off}")
        e("s_mov_b64 exec, -1")
    CS = (128 ** -0.5) * math.log2(math.e)

    vm = []
    ops = []
    for p in order:
        if p == "q": ops += [("xq", k) for k in range(3)] + [("q", u) for u in range(18)]
        if p == "w": ops += [("xw", k) for k in range(3)] + [("w", u) for u in range(24)]
        if p == "K": ops += [("K", i) for i in range(64)]
        if p == "V": ops += [("V", i) for i in range(64)]
        if p == "L": ops += [("s", i) for i in range(21)] + [("o", i) for i in range(18)]
    if IL:
        qs = [o for o in ops if o[0] == "q"]; ks = [o for o in ops if o[0] == "K"]
        rest = [o for o in ops if o[0] not in ("xq", "q", "K")]
        mix = []
        while qs:
            mix += qs[:IL[0]]; qs = qs[IL[0]:]
            mix += ks[:IL[1]]; ks = ks[IL[1]:]
        assert len(ks) >= 32
        ops = [o for o in ops if o[0] == "xq"] + mix + ks + rest
    pos = {o: j for j, o in enumerate(ops)}
    PR_K0 = pos[("K", 32)] - 32; PR_V0 = pos[("V", 0)]
    PR_HPUB = pos[("w", 23)] + 1
    PR_W2 = pos[("s", 20)] + 1
    PR_ALL = len(ops)
    assert pos[("w", 0)] < PR_V0

    ACCQ = 28; ACCH = 32; X = 36; AB = 52; KA = 60; vPR = 64; vW1 = 65; vXW = 66; vHPub = 67; vLast = 68; vPA = 69
    RING = 72; NR = 24
    lab("L_start")
    stamp(0)
    e("s_load_dwordx16 s[8:23], s[0:1], 0")
    e("s_load_dwordx8 s[24:31], s[0:1], 64")
    e("s_load_dwordx2 s[32:33], s[0:1], 104")
    e("s_cmp_ge_u32 s2, 256")
    e("s_cbranch_scc1 L_end")
    e("v_lshrrev_b32 v1, 6, v0")
    e(f"v_and_b32 v{vLane}, 63, v0")
    e(f"v_readfirstlane_b32 s{sW}, v1")
    e(f"v_lshrrev_b32 v{vG}, 4, v{vLane}")
    e(f"v_bfe_u32 v{vT0}, v{vLane}, 3, 1")
    e(f"v_lshl_add_u32 v{vSub}, v{vT0}, 2, v{vG}")
    e(f"v_and_b32 v{vJ}, 7, v{vLane}")
    e(f"v_and_b32 v{vN}, 15, v{vLane}")
    e(f"v_lshlrev_b32 v{vL16}, 4, v{vLane}")
    e(f"v_lshlrev_b32 v{vL4}, 2, v{vLane}")
    e(f"v_mov_b32 v{vZ}, 0")
    e("s_and_b32 s4, s2, 7")
    e(f"s_lshl_b32 s{sH}, s4, 1")
    e("s_bfe_u32 s65, s2, 0x10003")
    e(f"s_add_u32 s{sH}, s{sH}, s65")
    e(f"s_lshr_b32 s{sS}, s2, 4")
    e("s_lshl_b32 s4, s4, 5")
    e("s_lshr_b32 s5, s2, 3")
    e("s_add_u32 s4, s4, s5")
    e(f"s_cmp_eq_u32 s{sW}, 0")
    e("s_cbranch_scc1 L_loader")
    e(f"s_cmp_lg_u32 s{sW}, 1")
    e("s_cbranch_scc1 L_kv")
    e("s_getpc_b64 s[72:73]")
    lab("L_pc")
    e(f"v_lshlrev_b32 v{vT0}, 7, v{vLane}")
    e(f"global_load_dword v32, v{vT0}, s[72:73]")
    e(f"v_add_u32 v{vT0}, 8192, v{vT0}")
    e(f"v_min_u32 v{vT0}, L_codeend-L_pc-4, v{vT0}")
    e(f"global_load_dword v33, v{vT0}, s[72:73]")
    e(f"ds_write_b32 v{vL4}, v{vZ} offset:{L_PR}")
    e(f"ds_write_b32 v{vL4}, v{vZ} offset:{L_FL}")
    e("s_branch L_pwave")
    lab("L_loader")
    e("s_setprio 3")
    e(f"s_lshr_b32 s72, s{sS}, 2")
    e(f"s_and_b32 s73, s{sS}, 3")
    if CQX: e(f"s_xor_b32 s73, s73, {CQX}")
    e(f"s_lshl_b32 s74, s{sH}, 2")
    e("s_add_u32 s73, s73, s74")
    e(f"s_mul_i32 s68, s72, {144*8192}")
    e("s_lshl_b32 s74, s73, 7")
    e("s_add_u32 s68, s68, s74")
    e("s_mul_i32 s69, s72, 288")
    e(f"v_mul_u32_u24 v{vA0}, {18*8192}, v{vSub}")
    e(f"v_lshl_add_u32 v{vA0}, v{vJ}, 4, v{vA0}")
    e(f"v_mul_u32_u24 v{vA1}, 36, v{vSub}")
    e(f"s_mov_b32 s{sA+2}, 4718592"); e(f"s_mov_b32 s{sA+3}, 0x20000")
    e(f"s_movk_i32 s{sB+2}, 1152"); e(f"s_mov_b32 s{sB+3}, 0x20000")
    e(f"v_lshlrev_b32 v{vT0}, 2, v{vG}")
    e(f"v_xor_b32 v{vT0}, v{vT0}, v{vN}")
    e(f"v_lshlrev_b32 v{vT0}, 4, v{vT0}")
    e(f"v_lshl_add_u32 v{KA}, v{vG}, 8, v{vT0}")
    for u in range(1, 4): e(f"v_xor_b32 v{KA+u}, {16*u}, v{KA}")
    e(f"s_lshl_b32 s38, s{sH}, 23")
    e(f"s_lshl_b32 s75, s{sS}, 16")
    e("s_add_u32 s38, s38, s75")
    e(f"s_mul_i32 s75, s2, {HASH}")
    e("s_lshr_b32 s75, s75, 28")
    e("s_lshl_b32 s75, s75, 12")
    e("s_add_u32 s38, s38, s75")
    e(f"s_add_u32 s38, s38, {28672*256}")
    e(f"s_mov_b32 s{sC+2}, 134217728"); e(f"s_mov_b32 s{sC+3}, 0x20000")
    e("s_waitcnt lgkmcnt(0)")
    e(f"s_mov_b64 s[{sA}:{sA+1}], s[14:15]")
    e(f"s_mov_b64 s[{sB}:{sB+1}], s[8:9]")
    e(f"s_mov_b64 s[{sC}:{sC+1}], s[10:11]")

    def late_setup():
        stamp(1)
        e(f"s_load_dword s{sTag}, s[32:33], {WSB}")
        srd(sWS, 32, 536870912)
        e(f"s_lshl_b32 s70, s{sH}, 12")
        e(f"s_lshl_b32 s74, s{sS}, 8")
        if CQX: e(f"s_xor_b32 s74, s74, {CQX*256}")
        e("s_add_u32 s70, s70, s74")
        e(f"s_add_u32 s70, s70, {QP}")
        e(f"v_lshl_add_u32 v{vA1}, v{vG}, 3, v{vJ}")
        e(f"v_lshlrev_b32 v{vA1}, 4, v{vA1}")
        for r in range(4): e(f"v_mov_b32 v{ACC+r}, 0")
        hstore(ACC, 70, vA1, ""); vm.append(None)
        selsetup()
        xid_setup()
        e("s_mov_b32 s78, 0")
        if EARLYW: w1_setup()
    def w1_setup():
        if IDLE:
            e("s_add_u32 s74, s5, 1")
            e("s_lshr_b32 s74, s74, 3")
            e("s_sub_u32 s75, s5, s74")
            e("s_and_b32 s74, s5, 7")
            e("s_cmp_eq_u32 s74, 6")
            e("s_cselect_b32 s75, 27, s75")
        else:
            e("s_mov_b32 s75, s5")
        e("s_mov_b32 s72, 0")
        e("s_cmp_ge_u32 s75, 9"); e("s_addc_u32 s72, s72, 0")
        e("s_cmp_ge_u32 s75, 18"); e("s_addc_u32 s72, s72, 0")
        e("s_and_b32 s73, s2, 7")
        e("s_sub_u32 s73, s73, s72")
        e("s_mul_i32 s73, s73, 9")
        e("s_add_u32 s73, s73, s75")
        e(f"s_mul_i32 s66, s72, {192*9216}")
        e("s_lshl_b32 s74, s73, 7")
        e("s_add_u32 s66, s66, s74")
        e("s_mul_i32 s67, s72, 384")
        e("s_mul_i32 s71, s72, 18432")
        e("s_lshl_b32 s74, s73, 8")
        e("s_add_u32 s71, s71, s74")
        e(f"s_add_u32 s71, s71, {HP}")
        e("s_cmp_ge_u32 s75, 27")
        e("s_cselect_b32 s74, 0x70000000, 0")
        e(f"v_mul_u32_u24 v{vW1}, {24*9216}, v{vSub}")
        e(f"v_lshl_add_u32 v{vW1}, v{vJ}, 4, v{vW1}")
        e(f"v_add_u32 v{vW1}, s74, v{vW1}")
        e(f"v_mul_u32_u24 v{vXW}, 48, v{vSub}")
        e(f"v_add_u32 v{vHPub}, s74, v{vA1}")
        srd(sD, 20, 5308416)
        hstore(ACC, 71, vHPub, ""); vm.append(None)
        e(f"s_mul_i32 s76, s{sH}, 18432")
        e(f"s_mul_i32 s77, s{sS}, 1152")
        e("s_add_u32 s77, s77, s76")
        e(f"s_add_u32 s77, s77, {OP}")
        e(f"buffer_store_dwordx4 v[{ACC}:{ACC+3}], v{vL16}, s[{sWS}:{sWS+3}], s77 offen"); vm.append(None)
        e(f"v_lshlrev_b32 v{vPA}, 7, v{vSub}")
    def send_b(name):
        e("s_cmp_lg_u32 s78, 0")
        e(f"s_cbranch_scc1 {name}")
        e("s_mov_b32 s78, 1")
        e(f"s_add_u32 s70, s70, {DAB}")
        e(f"s_add_u32 s71, s71, {DAB}")
        hstore(ACCQ, 70, vA1, SP)
        hstore(ACCH, 71, vHPub, SP)
        lab(name)
    slot_of = {}
    ringn = [0]
    processed = set()
    def issue(j):
        t, i = ops[j]
        if t in ("q", "w", "V"):
            sl = ringn[0] % NR
            prev = [k for k, v in slot_of.items() if v == sl]
            assert all(k in processed for k in prev), ("ring overrun", j)
            slot_of[j] = sl; ringn[0] += 1
            r = RING + 4 * sl
        if t == "xq":
            e(f"buffer_load_dwordx4 v[{X+4*i}:{X+4*i+3}], v{vA1}, s[{sB}:{sB+3}], s69 offen offset:{16*i} {XP}")
        elif t == "q":
            e(f"buffer_load_dwordx4 v[{r}:{r+3}], v{vA0}, s[{sA}:{sA+3}], s68 offen nt")
            if i < 17: e("s_add_u32 s68, s68, 0x2000")
        elif t == "xw":
            assert pos[("q", 17)] in processed
            e(f"buffer_load_dwordx4 v[{X+4*i}:{X+4*i+3}], v{vXW}, s[{sB}:{sB+3}], s67 offen offset:{16*i} {XP}")
        elif t == "w":
            e(f"buffer_load_dwordx4 v[{r}:{r+3}], v{vW1}, s[{sD}:{sD+3}], s66 offen nt")
            if i < 23: e("s_add_u32 s66, s66, 0x2400")
        elif t == "K":
            e(f"buffer_load_dwordx4 v{KA+(i&3)}, s[{sC}:{sC+3}], s39 offen offset:{1024*(i&3)} nt lds")
        elif t == "V":
            e(f"buffer_load_dwordx4 v[{r}:{r+3}], v{vL16}, s[{sC}:{sC+3}], s39 offen offset:{1024*(i&3)} nt")
        elif t == "s":
            e(f"buffer_load_dwordx4 v{vLast if i == 20 else vL16}, s[{sA}:{sA+3}], s39 offen offset:{1024*(i&3)} nt lds")
        elif t == "o":
            e(f"buffer_load_dwordx4 v{vL16}, s[{sA}:{sA+3}], s39 offen offset:{1024*(i&3)} nt lds")
    def pre_issue(op):
        t, i = op
        if t == "xw" and i == 0 and not EARLYW: w1_setup()
        if t == "V" and i == 0: e(f"s_mov_b64 s[{sC}:{sC+1}], s[12:13]")
        if t in "KV" and i % 4 == 0:
            e(f"s_xor_b32 s39, s38, {1024*i}")
            if t == "K":
                e(f"s_mov_b32 m0, {L_K + 1024*i}")
                return True
        if t == "s" and i == 0:
            srd(sA, 24, 5308416)
            e(f"s_mul_i32 s39, s4, {18*1152}")
            e(f"v_mov_b32 v{vT1}, 0x7fff0000")
            e(f"v_cmp_gt_u32 vcc, 16, v{vLane}")
            e("s_nop 1")
            e(f"v_cndmask_b32 v{vLast}, v{vT1}, v{vL16}, vcc")
        if t == "o" and i == 0:
            srd(sA, 16, 4718592)
            e(f"s_lshl_b32 s39, s{sH}, 4")
            e(f"s_add_u32 s39, s39, s{sS}")
            e(f"s_mul_i32 s39, s39, {16*1152}")
        if t in "so" and i % 4 == 0:
            if i: e("s_add_u32 s39, s39, 4096")
            e(f"s_mov_b32 m0, {(L_W2 if t == 's' else L_WO) + 1024*i}")
            return True
        return False
    def progress(val):
        e(f"v_mov_b32 v{vPR}, {val}")
        e(f"ds_write_b32 v{vL4}, v{vPR} offset:{L_PR}")
    done = [0]
    def pread(qt):
        b = X + 8 * (qt & 1)
        e(f"ds_read_b128 v[{b}:{b+3}], v{vPA} offset:{L_P+32*qt}")
        e(f"ds_read_b128 v[{b+4}:{b+7}], v{vPA} offset:{L_P+32*qt+16}")
    def psrc(u): return X + 8 * ((u >> 4) & 1) + ((u & 15) >> 1)
    def pspin():
        def hook():
            e(f"s_cmp_lg_u32 s79, {PT}")
            e("s_cbranch_scc1 L_pf_nb")
            send_b("L_pf_nb")
        ldsspin("L_pf", vZ, L_PF, "1", sleep=1, extra=lambda: (pread(0), pread(1)), hook=hook)
        abuild(AB, psrc(0), 0); e("s_nop 1")
    def process_a(j):
        t, i = ops[j]
        if t in ("q", "w"):
            acc = ACCQ if t == "q" else ACCH
            if i == 0:
                abuild(AB, X, 0); e("s_nop 1")
            mfma(acc, AB + 4 * (i & 1), RING + 4 * slot_of[j], "0" if i == 0 else None)
        elif t == "V":
            if i == 0 and not EARLYP:
                pspin()
                stamp(7)
                e(f"v_readfirstlane_b32 s76, v{vT0}")
            mfma(ACC, AB + 4 * (i & 1), RING + 4 * slot_of[j], "0" if i == 0 else None)
        processed.add(j)
    def process_b(j):
        t, i = ops[j]
        if t in ("q", "w"):
            NU = 18 if t == "q" else 24
            acc = ACCQ if t == "q" else ACCH
            if i + 1 < NU:
                abuild(AB + 4 * ((i + 1) & 1), X + ((i + 1) >> 1), (i + 1) & 1); e("s_nop 0")
                if EARLYP and t == "w" and i == 22:
                    e(f"ds_read_b32 v{vT0}, v{vZ} offset:{L_PF}")
                    pread(0); pread(1)
            if i == NU - 1:
                stamp(2 if t == "q" else 3)
                if t == "q":
                    e("s_waitcnt lgkmcnt(0)")
                    tagsetup()
                    e("s_nop 2")
                elif EARLYP:
                    e("s_waitcnt lgkmcnt(0)")
                    e(f"v_cmp_gt_u32 vcc, 1, v{vT0}")
                    abuild(AB, psrc(0), 0)
                    e("s_nop 1")
                else:
                    e("s_nop 7")
                halfadd_tag(acc, KA if (EARLYP and t == "w") else AB)
                if t == "q": e(f"v_bfi_b32 v{acc+3}, s7, v{vXid}, v{acc+3}")
                if not FORCEB:
                    hstore(acc, 70 if t == "q" else 71, vA1 if t == "q" else vHPub, ""); vm.append(None)
                if t == "q": e("s_barrier")
                else:
                    progress(j + 1)
                    if EARLYP:
                        e("s_cbranch_vccz L_pok")
                        pspin()
                        lab("L_pok")
                        stamp(7)
                        e(f"v_readfirstlane_b32 s76, v{vT0}")
        elif t == "K":
            if i % 4 == 3 and i >= 32: progress(j + 1)
        elif t == "V":
            if i + 1 < 64:
                if (i + 1) % 16 == 0: e("s_waitcnt lgkmcnt(0)")
                abuild(AB + 4 * ((i + 1) & 1), psrc(i + 1), (i + 1) & 1); e("s_nop 0")
                if (i + 1) % 16 == 0 and (i + 1) // 16 + 1 < 4: pread((i + 1) // 16 + 1)
            if i == 1:
                e("s_cmp_eq_u32 s76, 1")
                e(f"s_cselect_b32 s65, 0, {DOB}")
                e("s_add_u32 s77, s77, s65")
            if i == OSTART: progress(j + 1)
            if i == 63:
                stamp(4)
                e("s_cmp_eq_u32 s76, 1")
                e("s_nop 6")
                tag4(ACC, ACC)
                if OWN: e(f"ds_write_b128 v{vL16}, v[{ACC}:{ACC+3}] offset:{L_S}")
                e("s_cbranch_scc0 L_os_b")
                e(f"buffer_store_dwordx4 v[{ACC}:{ACC+3}], v{vL16}, s[{sWS}:{sWS+3}], s77 offen")
                e("s_branch L_os_d")
                lab("L_os_b")
                e(f"buffer_store_dwordx4 v[{ACC}:{ACC+3}], v{vL16}, s[{sWS}:{sWS+3}], s77 offen {SP}")
                lab("L_os_d")
                vm.append(None)
        elif t == "s":
            if i == 20: progress(j + 1)
    setup_done = False
    for j, op in enumerate(ops):
        Wc = W1 if (W2 is None or op[0] not in "so") else W2
        if WK and op[0] == "K": Wc = WK
        if WV and op[0] == "V": Wc = WV
        if WB and pos[("V", 63)] in processed: Wc = WB
        needs_gap = pre_issue(op)
        newly = []
        def big(x): return (not BIGW) or (x is not None and ops[x][0] not in ("xq", "xw"))
        if sum(big(x) for x in vm[done[0]:]) >= Wc and big(j):
            if not setup_done:
                late_setup(); setup_done = True
            bi = [k for k in range(done[0], len(vm)) if big(vm[k])]
            nd = bi[len(bi) - Wc] + 1
            e(f"s_waitcnt vmcnt({len(vm)-nd})")
            newly = [x for x in vm[done[0]:nd] if x is not None]; done[0] = nd
        elif needs_gap:
            e("s_nop 0")
        for x in newly[:-1]:
            process_a(x); process_b(x)
            if ops[x][0] in "qwV": e("s_nop 0")
        if newly:
            last = newly[-1]
            urgent = ops[last] in (("V", 63), ("q", 17))
            process_a(last)
            if urgent: process_b(last)
        issue(j); vm.append(j)
        if newly and not urgent: process_b(last)
    stamp(5)
    while done[0] < len(vm):
        x = vm[done[0]]
        rest = [y for y in vm[done[0]:] if y is not None and (ops[y][0] not in "so" or ops[y] == ("s", 20))]
        if not rest:
            e(f"ds_read_b32 v{vT0}, v{vZ} offset:{L_CF}")
            e("s_waitcnt lgkmcnt(0)")
            e(f"v_cmp_ne_u32 vcc, 1, v{vT0}")
            e("s_cbranch_vccz L_ld_end")
            send_b("L_ld_end")
            e("s_waitcnt vmcnt(0)"); done[0] = len(vm); break
        k = vm.index(rest[0])
        e(f"s_waitcnt vmcnt({len(vm)-k-1})")
        done[0] = k + 1
        e("s_nop 0")
        process_a(rest[0]); process_b(rest[0])
    if BAR: e("s_barrier")
    else: progress(PR_ALL)
    stamp(6)
    if CLEAN is not None:
        hstore(ACCQ, 70, vA1, SP)
        hstore(ACCH, 71, vHPub, SP)
        if CLEAN: e(f"s_sleep {CLEAN}")
        e(f"buffer_store_dwordx4 v[{ACC}:{ACC+3}], v{vL16}, s[{sWS}:{sWS+3}], s77 offen {SP}")
    e("s_branch L_finb4" if stamps else "s_endpgm")

    lab("L_pwave")
    e("s_setprio 2")
    e("s_waitcnt lgkmcnt(0)")
    e(f"s_load_dword s{sTag}, s[32:33], {WSB}")
    srd(sWS, 32, 536870912)
    consts()
    e(f"s_lshl_b32 s76, s{sH}, 12")
    e(f"s_add_u32 s76, s76, {QP}")
    e("s_xor_b32 s39, s76, 0x1000")
    e(f"v_lshlrev_b32 v{vT0}, 7, v{vG}")
    e(f"v_lshl_add_u32 v{vT0}, v{vJ}, 4, v{vT0}")
    e(f"v_and_b32 v{vT1}, 8, v{vLane}")
    e(f"v_add_u32 v{vA0}, v{vT0}, v{vT1}")
    vG_, vSA, vGA, vGS, vL32, vL256 = 17, 19, 20, 21, 22, 23
    e(f"v_lshrrev_b32 v{vT0}, 5, v{vLane}")
    e(f"v_and_b32 v{vT2}, 3, v{vLane}")
    e(f"v_lshlrev_b32 v{vT1}, 6, v{vT0}")
    e(f"v_lshl_add_u32 v{vSA}, v{vT2}, 4, v{vT1}")
    e(f"v_lshrrev_b32 v{vT1}, 2, v{vLane}")
    e(f"v_mul_u32_u24 v{vT1}, 1152, v{vT1}")
    e(f"v_lshl_add_u32 v{vGS}, v{vT2}, 4, v{vT1}")
    e(f"v_and_b32 v{vT3}, 1, v{vLane}")
    e(f"v_lshl_add_u32 v{vGA}, v{vT3}, 4, v{vT1}")
    e(f"v_bfe_u32 v{vT0}, v{vLane}, 1, 1")
    e(f"v_lshl_add_u32 v{vGA}, v{vT0}, 8, v{vGA}")
    e(f"v_lshl_add_u32 v{vA1}, v{vT0}, 2, v{vG}")
    e(f"v_lshl_add_u32 v{vA1}, v{vT3}, 3, v{vA1}")
    e(f"v_lshlrev_b32 v{vA1}, 1, v{vA1}")
    e(f"v_lshlrev_b32 v{vL32}, 5, v{vLane}")
    e(f"v_lshlrev_b32 v{vL256}, 8, v{vLane}")
    e(f"s_mul_i32 s75, s{sH}, 18432")
    e(f"s_add_u32 s75, s75, {OP}")
    e(f"s_mul_i32 s77, s{sS}, 1152")
    e("s_add_u32 s77, s77, s75")
    e(f"s_lshr_b32 s74, s{sS}, 3")
    e("s_lshl_b32 s78, s74, 9")
    e(f"s_and_b32 s65, s{sS}, 7")
    e("s_lshl_b32 s65, s65, 5")
    e("s_add_u32 s78, s78, s65")
    vOwn = 18
    e(f"v_sub_u32 v{vOwn}, v{vGA}, v{vT1}")
    e(f"v_add_u32 v{vOwn}, s78, v{vOwn}")
    e(f"s_lshl_b32 s65, s{sS}, 2")
    e("s_lshl_b64 s[40:41], 15, s65")
    e("s_add_u32 s78, s78, s75")
    e("s_lshl_b32 s74, s74, 6")
    e("s_add_u32 s74, s74, s75")
    e("s_add_u32 s74, s74, 1024")
    for r in range(4): e(f"v_mov_b32 v{ACC+r}, 0")
    e("s_mov_b64 exec, 0xff")
    e(f"buffer_store_dwordx4 v[{ACC}:{ACC+3}], v{vL16}, s[{sWS}:{sWS+3}], s77 offen offset:1024")
    e("s_mov_b64 exec, -1")
    xid_setup()
    e("s_waitcnt lgkmcnt(0)")
    tagsetup()
    e("s_barrier")
    stamp(1)
    N = 32
    QR = [96, 100, 104, 108]
    mpoll("L_q", QR, 66, 44, lambda k, r: e(f"buffer_load_dwordx4 v[{r}:{r+3}], v{vL16}, s[{sWS}:{sWS+3}], s76 offen offset:{1024*k} {LP}"), QD, switch=[76])
    for k in range(4): mask4(128 + 4 * k, QR[k], "0xfffff000")
    pkadd(N, 128, 132); pkadd(N + 4, 136, 140)
    stamp(3)
    pkadd(N, N, N + 4)
    e(f"v_cvt_pk_bf16_f32 v{N+4}, v{N}, v{N+1}")
    e(f"v_cvt_pk_bf16_f32 v{N+5}, v{N+2}, v{N+3}")
    e(f"v_mov_b32 v{vT1}, 1")
    e(f"ds_write_b64 v{vA0}, v[{N+4}:{N+5}] offset:{L_Q}")
    flagset(L_QF, vT1)
    SB = 120
    e(f"v_not_b32 v{SB}, v{vTag}")
    e("s_mov_b64 exec, 0xffff")
    e(f"buffer_load_dwordx4 v[{SB}:{SB+3}], v{vL256}, s[{sWS}:{sWS+3}], s39 offen {LP}")
    e("s_mov_b64 exec, -1")
    ST = 40; FA = 44
    for k in range(4): e(f"v_xor_b32 v{FA+k}, v{QR[k]+3}, v{vXid}")
    e(f"v_or3_b32 v{FA}, v{FA}, v{FA+1}, v{FA+2}")
    e(f"v_or_b32 v{FA}, v{FA}, v{FA+3}")
    e(f"v_and_b32 v{FA}, s7, v{FA}")
    e(f"v_cmp_ne_u32 vcc, 0, v{FA}")
    e("s_cmp_lg_u64 vcc, 0" if not abl else "s_cmp_lg_u32 0, 0")
    e(f"s_cselect_b32 s38, {DOB}, {DOB if FORCEB else 0}")
    e(f"s_cselect_b32 s37, 2, {2 if FORCEB else 1}")
    e("s_add_u32 s74, s74, s38")
    e("s_add_u32 s77, s77, s38")
    e("s_add_u32 s78, s78, s38")
    e(f"v_mov_b32 v{vT2}, s37")
    e(f"v_mov_b32 v{vT3}, {f32(CS)}")
    S = 48
    def sextra():
        e(f"ds_read_b128 v[{S}:{S+3}], v{vL32} offset:{L_S}")
        e(f"ds_read_b128 v[{S+4}:{S+7}], v{vL32} offset:{L_S+16}")
    if LIGHT: ldsspin("L_c2a", vZ, L_C2, "7", sleep=2)
    ldsspin("L_c2", vZ, L_C2, "9", sleep=(0 if LIGHT else 1), extra=sextra)
    stamp(4)
    M = 62; l = 61
    e(f"v_max3_f32 v{M}, v{S}, v{S+1}, v{S+2}")
    e(f"v_max3_f32 v{M+1}, v{S+3}, v{S+4}, v{S+5}")
    e(f"v_max3_f32 v{M}, v{M}, v{S+6}, v{S+7}")
    e(f"v_max_f32 v{M}, v{M}, v{M+1}")
    for sh in (8, 4, 2, 1):
        e("s_nop 1")
        e(f"v_max_f32_dpp v{M}, v{M}, v{M} row_ror:{sh} {DPP}")
    xrow_op("v_max_f32", M, M + 1, only16=True)
    e(f"v_mul_f32 v{M}, v{vT3}, v{M}")
    e(f"v_and_b32 v{M}, 0xffffff00, v{M}")
    for k in range(8): e(f"v_fma_f32 v{S+k}, v{S+k}, v{vT3}, -v{M}")
    for k in range(8): e(f"v_exp_f32 v{S+k}, v{S+k}")
    for k in range(4): e(f"v_cvt_pk_bf16_f32 v{FA+k}, v{S+2*k}, v{S+2*k+1}")
    e(f"ds_write_b128 v{vL16}, v[{FA}:{FA+3}] offset:{L_P}")
    flagset(L_PF, vT2)
    stamp(5)
    e(f"ds_read_b32 v{vG_}, v{vZ} offset:{L_G}")
    pkadd(S, S, S + 4)
    e(f"v_pk_add_f32 v[{S}:{S+1}], v[{S}:{S+1}], v[{S+2}:{S+3}]")
    e(f"v_add_f32 v{S}, v{S}, v{S+1}")
    for sh in (8, 4, 2, 1):
        e("s_nop 1")
        e(f"v_add_f32_dpp v{S}, v{S}, v{S} row_ror:{sh} {DPP}")
    xrow_op("v_add_f32", S, S + 1, only16=True)
    e(f"v_perm_b32 v{ST}, v{M}, v{vTag}, s{sTS}")
    e(f"v_perm_b32 v{ST+1}, v{S}, v{vTag}, s{sTS+1}")
    e(f"v_perm_b32 v{ST+2}, v{ST}, v{vTag}, s{sTS+2}")
    e(f"v_perm_b32 v{ST+3}, v{ST}, v{vTag}, s{sTS+3}")
    e("s_mov_b32 exec_lo, 0xf")
    e("s_mov_b32 exec_hi, 0xf")
    e("s_cmp_eq_u32 s38, 0")
    e("s_cbranch_scc0 L_ss_b")
    e(f"buffer_store_dwordx4 v[{ST}:{ST+3}], v{vSA}, s[{sWS}:{sWS+3}], s77 offen offset:1024")
    e("s_branch L_ss_d")
    lab("L_ss_b")
    e(f"buffer_store_dwordx4 v[{ST}:{ST+3}], v{vSA}, s[{sWS}:{sWS+3}], s77 offen offset:1024 {SP}")
    lab("L_ss_d")
    e("s_mov_b64 exec, 0xffff")
    e("s_cmp_lg_u32 s38, 0")
    e("s_cbranch_scc1 L_sib_fail")
    e("s_mov_b64 s[66:67], 0xffff")
    mpoll("L_sib", [SB], 66, 64, lambda k, r: e(f"buffer_load_dwordx4 v[{r}:{r+3}], v{vL256}, s[{sWS}:{sWS+3}], s39 offen {LP}"),
          (0, 4, 3), base="0xffff", init=False, precheck=True, limit=4, fail="L_sib_fail")
    e(f"v_xor_b32 v{FA}, v{SB+3}, v{vXid}")
    e(f"v_and_b32 v{FA}, s7, v{FA}")
    e(f"v_cmp_ne_u32 vcc, 0, v{FA}")
    if not abl: e("s_cbranch_vccnz L_sib_fail")
    flagset(L_CF, vT1)
    lab("L_sib_fail")
    e("s_mov_b64 exec, -1")
    SR = 112; OR_ = 116; O2 = 56
    mpoll("L_st", [SR], 66, 64, lambda k, r: e(f"buffer_load_dwordx4 v[{r}:{r+3}], v{vGS}, s[{sWS}:{sWS+3}], s74 offen {LP}"), SD)
    e(f"v_and_b32 v{FA}, 0xffffff00, v{SR}")
    e(f"v_and_b32 v{FA+1}, 0xffffff00, v{SR+1}")
    e("s_nop 0")
    e(f"v_max_f32_dpp v{M}, v{FA}, v{FA} row_ror:8 {DPP}")
    e("s_nop 1")
    e(f"v_max_f32_dpp v{M}, v{M}, v{M} row_ror:4 {DPP}")
    xrow_op("v_max_f32", M, vT0)
    e(f"v_sub_f32 v{M}, v{FA}, v{M}")
    e(f"v_exp_f32 v{M}, v{M}")
    e("s_waitcnt lgkmcnt(0)")
    e(f"v_mul_f32 v{l}, v{FA+1}, v{M}")
    for sh in (8, 4):
        e("s_nop 1")
        e(f"v_add_f32_dpp v{l}, v{l}, v{l} row_ror:{sh} {DPP}")
    xrow_op("v_add_f32", l, vT0)
    e(f"v_rcp_f32 v{l}, v{l}")
    e(f"v_mul_f32 v{M}, v{M}, v{vG_}")
    e(f"v_mul_f32 v{M}, v{M}, v{l}")
    stamp(2)
    e(f"s_movk_i32 s66, {PR_V0 + OSTART + 1}")
    ldsspin("L_ow", vL4, L_PR, "s66", sleep=2)
    if not OWN:
        mpoll("L_o", [OR_], 68, 64, lambda k, r: e(f"buffer_load_dwordx4 v[{r}:{r+3}], v{vGA}, s[{sWS}:{sWS+3}], s78 offen {LP}"), OD)
    else:
        mpoll_init([OR_], 68)
        e("s_mov_b32 s79, 0")
        lab("L_o_loop")
        e("s_andn2_b64 exec, s[68:69], s[40:41]")
        e("s_cbranch_execz L_o_s")
        e(f"buffer_load_dwordx4 v[{OR_}:{OR_+3}], v{vGA}, s[{sWS}:{sWS+3}], s78 offen {LP}")
        lab("L_o_s")
        for c in range(OD[2] + 1):
            if c == OD[2]: e(f"s_waitcnt vmcnt({OD[3]-1})")
            e("s_mov_b64 exec, s[40:41]")
            e(f"ds_read_b128 v[{OR_}:{OR_+3}], v{vOwn} offset:{L_S}")
            e("s_mov_b64 exec, -1")
            if OD[1] > 1 and c < OD[2]: e(f"s_sleep {OD[1]-1}")
            e("s_waitcnt lgkmcnt(0)")
            mpoll_check([OR_], 68, 64, "L_o_done")
        e("s_add_u32 s79, s79, 1")
        e(f"s_cmp_lt_u32 s79, {SPIN_MAX*4}")
        e("s_cbranch_scc1 L_o_loop")
        lab("L_o_done")
    stamp(6)
    mask4(O2, OR_)
    e(f"v_pk_mul_f32 v[{O2}:{O2+1}], v[{O2}:{O2+1}], v[{M}:{M+1}] op_sel:[0,0] op_sel_hi:[1,0]")
    e(f"v_pk_mul_f32 v[{O2+2}:{O2+3}], v[{O2+2}:{O2+3}], v[{M}:{M+1}] op_sel:[0,0] op_sel_hi:[1,0]")
    red16(O2)
    e(f"v_cvt_pk_bf16_f32 v{O2}, v{O2}, v{O2}")
    e("s_mov_b32 exec_lo, 0x000f000f")
    e("s_mov_b32 exec_hi, 0x000f000f")
    e(f"ds_write_b16 v{vA1}, v{O2} offset:{L_O}")
    if BAR:
        e("s_waitcnt lgkmcnt(0)")
        e("s_barrier")
        if CLEAN is not None:
            e("s_mov_b32 exec_lo, 0xf")
            e("s_mov_b32 exec_hi, 0xf")
            e(f"buffer_store_dwordx4 v[{ST}:{ST+3}], v{vSA}, s[{sWS}:{sWS+3}], s77 offen offset:1024 {SP}")
        e("s_mov_b64 exec, -1")
    else:
        flagset(L_OF, vT1)
    stamp(7)
    if WBL is not None:
        e(f"s_cmp_ge_u32 s5, {WBL}")
        e("s_cbranch_scc1 L_nowb")
        e("buffer_wbl2 sc1")
        lab("L_nowb")
    e("s_branch L_finb4" if stamps else "s_endpgm")

    lab("L_kv")
    TMP = 28
    VD = 32; LD = 64; KF = 84; QF = 116; S = 132; KA = 140
    vWO, vW2, vMX2, vHA, vGg, vB2, vSW, vW2b = 144, 145, 146, 147, 148, 149, 150, 151
    HV = 152; vVA = 156; vOne = 157; vOut = 159
    sKW = 37
    e(f"s_sub_u32 s{sKW}, s{sW}, 2")
    e(f"s_cmp_eq_u32 s{sW}, 10")
    e("s_cbranch_scc1 L_w10")
    def common_setup():
        e("s_waitcnt lgkmcnt(0)")
        e(f"s_load_dword s{sTag}, s[32:33], {WSB}")
        srd(sWS, 32, 536870912)
        selsetup()
        e(f"v_lshl_add_u32 v{vT0}, v{vG}, 3, v{vJ}")
        e(f"v_lshrrev_b32 v{vT1}, 2, v{vT0}")
        e(f"v_lshlrev_b32 v{vT1}, 14, v{vT1}")
        e(f"v_and_b32 v{vT0}, 3, v{vT0}")
        e(f"v_lshl_add_u32 v{vA0}, v{vT0}, 4, v{vT1}")
        e("s_lshl_b32 s74, s4, 6")
        e(f"s_lshl_b32 s75, s{sKW}, 16")
        e("s_add_u32 s74, s74, s75")
        e(f"s_add_u32 s74, s74, {FP}")
        if FPT == "w":
            for r in range(4): e(f"v_mov_b32 v{ACC+r}, 0")
            hstore(ACC, 74, vA0, SP)
        if FPT == "r":
            e("s_mov_b64 exec, 0x00ff00ff")
            e(f"buffer_load_dwordx4 v[{TMP}:{TMP+3}], v{vA0}, s[{sWS}:{sWS+3}], s74 offen sc1")
            e("s_mov_b64 exec, -1")
        e(f"s_lshl_b32 s75, s{sKW}, 7")
        e(f"v_lshl_add_u32 v{vT0}, v{vJ}, 4, s75")
        e(f"v_mul_u32_u24 v{vWO}, {2*1152}, v{vSub}")
        e(f"v_add_u32 v{vWO}, v{vWO}, v{vT0}")
        e(f"v_mul_u32_u24 v{vW2}, 1152, v{vSub}")
        e(f"v_add_u32 v{vW2}, v{vW2}, v{vT0}")
        e(f"v_min_u32 v{vT1}, 1, v{vSub}")
        e(f"v_mul_u32_u24 v{vW2b}, 1152, v{vT1}")
        e(f"v_add_u32 v{vW2b}, v{vW2b}, v{vT0}")
        e("s_and_b32 s75, s4, 1")
        e("s_lshl_b32 s75, s75, 3")
        e(f"v_lshl_add_u32 v{vHA}, v{vSub}, 2, s75")
        e(f"v_lshlrev_b32 v{vA1}, 2, v{vSub}")
        srd(sC, 30, 1152)
        srd(sD, 26, 1152)
        e("s_lshr_b32 s75, s2, 2"); e("s_lshl_b32 s75, s75, 7")
        e("s_and_b32 s76, s2, 1"); e("s_lshl_b32 s76, s76, 6"); e("s_add_u32 s75, s75, s76")
        e("s_and_b32 s76, s2, 2"); e("s_lshl_b32 s76, s76, 2"); e("s_add_u32 s77, s75, s76")
        e(f"v_and_b32 v{vT0}, 3, v{vLane}")
        e(f"v_lshl_add_u32 v{vT2}, v{vG}, 2, v{vT0}")
        e(f"v_lshlrev_b32 v{vT0}, 4, v{vT0}")
        e(f"v_bfe_u32 v{vT1}, v{vLane}, 2, 2")
        e(f"v_lshl_add_u32 v{vOut}, v{vT1}, 1, v{vT0}")
        e("s_lshl_b32 s76, s2, 14")
        e(f"s_lshl_b32 s75, s{sKW}, 11")
        e("s_add_u32 s76, s76, s75")
        e(f"s_add_u32 s76, s76, {FP}")
        e(f"s_lshl_b32 s75, s{sKW}, 2")
        e(f"v_lshl_add_u32 v{vMX2}, v{vT2}, 5, s75")
        e(f"v_lshlrev_b32 v{vVA}, 5, v{vN}")
        e(f"v_mov_b32 v{vOne}, 1")
        e("s_waitcnt lgkmcnt(0)")
        tagsetup()
    common_setup()
    e("s_cmp_ge_u32 s2, 36")
    e("s_cbranch_scc1 L_nored0")
    e(f"s_cmp_lg_u32 s{sW}, 2")
    e("s_cbranch_scc1 L_nored0")
    e(f"buffer_load_ushort v{vB2}, v{vOut}, s[{sD}:{sD+3}], s77 offen nt")
    e(f"buffer_load_ushort v{vT3}, v{vOut}, s[{sC}:{sC+3}], s77 offen nt")
    lab("L_nored0")
    e(f"s_lshl_b32 s38, s{sKW}, 12")
    e(f"s_add_u32 s38, s38, {L_K}")
    e(f"v_and_b32 v{vT0}, 3, v{vN}")
    e(f"v_lshrrev_b32 v{vT1}, 2, v{vN}")
    e(f"v_lshl_add_u32 v{vT0}, v{vT0}, 2, v{vT1}")
    e(f"v_xor_b32 v{vT1}, v{vG}, v{vN}")
    e(f"v_lshlrev_b32 v{vT1}, 4, v{vT1}")
    e(f"v_lshl_add_u32 v{vT0}, v{vT0}, 8, v{vT1}")
    e(f"v_add_u32 v{KA}, s38, v{vT0}")
    for k in range(1, 4): e(f"v_xor_b32 v{KA+k}, {64*k}, v{KA}")
    e(f"v_lshrrev_b32 v{vT0}, 3, v{vN}")
    e(f"v_lshlrev_b32 v{vT1}, 8, v{vT0}")
    e(f"v_lshl_add_u32 v{vT1}, v{vG}, 4, v{vT1}")
    e(f"s_lshl_b32 s66, s{sKW}, 4")
    e(f"v_lshl_add_u32 v{vSW}, v{vSub}, 8, s66")
    e(f"s_add_u32 s66, s75, {PR_K0 + 32 + 4}")
    e("s_barrier")
    def qextra():
        for k in range(4):
            e(f"ds_read_b128 v[{QF+4*k}:{QF+4*k+3}], v{vT1} offset:{L_Q+64*k}")
    if LIGHT:
        ldsspin("L_qf", vZ, L_QF, "1", sleep=2)
        qextra()
    else:
        ldsspin("L_qf", vZ, L_QF, "1", sleep=4, extra=qextra)
    stamp(4)
    ldsspin("L_kw", vL4, L_PR, "s66", sleep=1)
    for t in range(2):
        for k in range(4):
            r = KF + 16 * t + 4 * k
            e(f"ds_read_b128 v[{r}:{r+3}], v{KA+k} offset:{32768*t}")
    for t in range(2):
        for k in range(4):
            e(f"s_waitcnt lgkmcnt({7-4*t-k})")
            mfma(S + 4 * t, KF + 16 * t + 4 * k, QF + 4 * k, "0" if k == 0 else None)
    e("s_mov_b32 exec_lo, 0x01010101")
    e("s_mov_b32 exec_hi, 0x01010101")
    e(f"ds_write_b128 v{vSW}, v[{S}:{S+3}] offset:{L_S}")
    e("s_nop 4")
    e(f"ds_write_b128 v{vSW}, v[{S+4}:{S+7}] offset:{L_S+128}")
    e("s_mov_b64 exec, 1")
    e(f"ds_add_u32 v{vZ}, v{vOne} offset:{L_C2}")
    e("s_mov_b64 exec, -1")
    stamp(5)
    e("s_waitcnt vmcnt(0)")
    lab("L_tail")
    def hextra():
        for u in range(3):
            e(f"ds_read_b32 v{HV+u}, v{vHA} offset:{L_H+32*u}")
        e(f"ds_read_b32 v{vGg}, v{vZ} offset:{L_G}")
    ldsspin("L_hf", vZ, L_HF, "1", sleep=4, extra=hextra)
    e(f"v_cmp_gt_u32 vcc, 2, v{vSub}")
    e(f"v_sub_f32 v{vGg}, 1.0, v{vGg}")
    e("s_nop 0")
    e(f"v_cndmask_b32 v{HV+2}, 0, v{HV+2}, vcc")
    for u in range(3): e(f"v_mul_f32 v{HV+u}, v{HV+u}, v{vGg}")
    e(f"v_cvt_pk_bf16_f32 v{HV}, v{HV}, v{HV+1}")
    e(f"v_cvt_pk_bf16_f32 v{HV+1}, v{HV+2}, v{HV+2}")
    abuild(KF, HV, 0); abuild(KF + 4, HV, 1); abuild(KF + 8, HV + 1, 0)
    e(f"s_movk_i32 s66, {PR_W2}")
    e(f"s_movk_i32 s67, {PR_ALL}")
    mpoll_init([32, 36], 68)
    ldsspin("L_w2f", vL4, L_PR, "s66", sleep=4)
    e(f"ds_read_b128 v[{LD+8}:{LD+11}], v{vW2} offset:{L_W2}")
    e(f"ds_read_b128 v[{LD+12}:{LD+15}], v{vW2} offset:{L_W2+8*1152}")
    e(f"ds_read_b128 v[{LD+16}:{LD+19}], v{vW2b} offset:{L_W2+16*1152}")
    e("s_waitcnt lgkmcnt(0)")
    for u in range(3):
        mfma(ACC, KF + 4 * u, LD + 8 + 4 * u, "0" if u == 0 else None)
    stamp(6)
    if BAR:
        e("s_barrier")
        e(f"ds_read_b32 v{HV}, v{vA1} offset:{L_O}")
    else:
        e("s_mov_b32 s79, 0")
        lab("L_last")
        e(f"ds_read_b32 v{vT0}, v{vL4} offset:{L_PR}")
        e(f"ds_read_b32 v{vT1}, v{vZ} offset:{L_OF}")
        e(f"ds_read_b32 v{HV}, v{vA1} offset:{L_O}")
        e("s_waitcnt lgkmcnt(1)")
        e(f"v_mul_u32_u24 v{vT0}, v{vT0}, v{vT1}")
        e(f"v_cmp_gt_u32 vcc, s67, v{vT0}")
        e("s_cbranch_vccz L_last_d")
        if LS: e(f"s_sleep {LS}")
        e("s_add_u32 s79, s79, 1")
        e(f"s_cmp_lt_u32 s79, {SPIN_MAX*16}")
        e("s_cbranch_scc1 L_last")
        lab("L_last_d")
    e(f"ds_read_b128 v[{LD}:{LD+3}], v{vWO} offset:{L_WO}")
    e(f"ds_read_b128 v[{LD+4}:{LD+7}], v{vWO} offset:{L_WO+1152}")
    e("s_waitcnt lgkmcnt(2)")
    abuild(KF + 12, HV, 0)
    abuild(KF + 16, HV, 1)
    e("s_waitcnt lgkmcnt(0)")
    mfma(ACC, KF + 12, LD)
    mfma(ACC, KF + 16, LD + 4)
    stamp(7)
    e("s_nop 7")
    halfadd_tag(ACC, TMP)
    hstore(ACC, 74, vA0, FSP or SP)
    stamp(8)
    e("s_cmp_ge_u32 s2, 36")
    e("s_cbranch_scc1 L_fin")
    e(f"s_cmp_eq_u32 s{sW}, 10")
    e("s_cbranch_scc1 L_finb4" if stamps else "s_cbranch_scc1 L_fin")
    R = 84
    mpoll("L_f", [32, 36], 68, 88, lambda k, r: e(f"buffer_load_dwordx4 v[{r}:{r+3}], v{vL16}, s[{sWS}:{sWS+3}], s76 offen offset:{1024*k} {FLP or LP}"), FD, init=False)
    mask4(R, 32); mask4(R + 4, 36)
    pkadd(R, R, R + 4)
    stamp(2)
    red16(R)
    e("s_mov_b32 exec_lo, 0x000f000f")
    e("s_mov_b32 exec_hi, 0x000f000f")
    e(f"ds_write_b32 v{vMX2}, v{R} offset:{L_F}")
    e("s_mov_b64 exec, -1")
    e(f"v_lshlrev_b32 v{vB2}, 16, v{vB2}")
    e("s_waitcnt lgkmcnt(0)")
    e("s_barrier")
    e(f"s_cmp_eq_u32 s{sW}, 2")
    e("s_cbranch_scc0 L_fin")
    e(f"ds_read_b128 v[{R}:{R+3}], v{vVA} offset:{L_F}")
    e(f"ds_read_b128 v[{R+4}:{R+7}], v{vVA} offset:{L_F+16}")
    e("s_waitcnt lgkmcnt(0)")
    pkadd(R, R, R + 4)
    e(f"v_pk_add_f32 v[{R}:{R+1}], v[{R}:{R+1}], v[{R+2}:{R+3}]")
    e(f"v_add_f32 v{R}, v{R}, v{R+1}")
    e(f"v_fma_f32 v{R}, v{vB2}, v{vGg}, v{R}")
    e(f"v_cvt_pk_bf16_f32 v{R}, v{R}, v{R}")
    e("s_mov_b64 exec, 0xffff")
    e(f"buffer_store_short v{R}, v{vOut}, s[{sC}:{sC+3}], s77 offen {OSP}")
    e("s_cmp_eq_u32 s2, 0")
    e("s_cbranch_scc0 L_fin")
    e("s_mov_b64 exec, 1")
    e(f"s_mov_b32 s66, {WSB}")
    e(f"buffer_store_dword v{vTag}, v{vZ}, s[{sWS}:{sWS+3}], s66 offen {OSP}")
    e("s_branch L_fin")

    lab("L_w10")
    e(f"v_lshlrev_b32 v{vT2}, 5, v{vLane}")
    e("s_waitcnt lgkmcnt(0)")
    B1 = VD + 24
    srd(sA, 8, 1152)
    srd(sB, 28, 1152)
    srd(sC, 22, 9216)
    e(f"buffer_load_dwordx4 v[{VD}:{VD+3}], v{vT2}, s[{sA}:{sA+3}], 0 offen {XP}")
    e(f"buffer_load_dwordx4 v[{VD+4}:{VD+7}], v{vT2}, s[{sA}:{sA+3}], 0 offen offset:16 {XP}")
    e(f"buffer_load_dwordx4 v[{VD+8}:{VD+11}], v{vT2}, s[{sB}:{sB+3}], 0 offen {XP}")
    e(f"buffer_load_dwordx4 v[{VD+12}:{VD+15}], v{vT2}, s[{sB}:{sB+3}], 0 offen offset:16 {XP}")
    e("s_mul_i32 s38, s4, 18")
    e("s_lshr_b32 s38, s38, 2")
    e("s_lshl_b32 s76, s38, 3")
    e(f"v_lshlrev_b32 v{vT0}, 3, v{vLane}")
    e("s_mov_b64 exec, 0x1f")
    e(f"buffer_load_dwordx2 v[{B1}:{B1+1}], v{vT0}, s[{sC}:{sC+3}], s76 offen nt")
    e(f"s_lshl_b32 s66, s{sH}, 23")
    e(f"s_add_u32 s66, s66, {28672*256}")
    e(f"s_lshl_b32 s67, s{sH}, 4")
    e(f"s_add_u32 s67, s67, s{sS}")
    e(f"s_mul_i32 s67, s67, {16*1152}")
    e(f"s_mul_i32 s68, s4, {18*1152}")
    srd(sA, 12, 134217728)
    srd(sB, 16, 4718592)
    srd(sC, 24, 5308416)
    srd(sD, 20, 5308416)
    e(f"v_lshlrev_b32 v{vT0}, 21, v{vLane}")
    e("s_mov_b64 exec, 1")
    e(f"buffer_load_dword v{VD+18}, v{vZ}, s[{sA}:{sA+3}], s66 offen nt")
    e(f"buffer_load_dword v{VD+19}, v{vZ}, s[{sB}:{sB+3}], s67 offen nt")
    e(f"buffer_load_dword v{VD+20}, v{vZ}, s[{sC}:{sC+3}], s68 offen nt")
    e("s_mov_b64 exec, 7")
    e(f"buffer_load_dword v{VD+21}, v{vT0}, s[{sD}:{sD+3}], 0 offen {XP}")
    e("s_mov_b64 exec, -1")
    common_setup()
    e("s_barrier")
    e(f"v_mov_b32 v{vGg}, 0")
    e(f"s_waitcnt vmcnt({6 if FPT else 5})")
    for k in range(8):
        e(f"v_dot2_f32_bf16 v{vGg}, v{VD+k}, v{VD+8+k}, v{vGg}")
    e("s_nop 2")
    for sh in (8, 4, 2, 1):
        e(f"v_add_f32_dpp v{vGg}, v{vGg}, v{vGg} row_ror:{sh} {DPP}")
        e("s_nop 1")
    xrow_op("v_add_f32", vGg, vT0)
    e(f"v_mul_f32 v{vGg}, {f32(-math.log2(math.e))}, v{vGg}")
    e(f"v_exp_f32 v{vGg}, v{vGg}")
    e("s_nop 0")
    e(f"v_add_f32 v{vGg}, 1.0, v{vGg}")
    e(f"v_rcp_f32 v{vGg}, v{vGg}")
    e("s_mov_b64 exec, 1")
    e(f"ds_write_b32 v{vZ}, v{vGg} offset:{L_G}")
    e(f"ds_add_u32 v{vZ}, v{vOne} offset:{L_C2}")
    e("s_mov_b64 exec, -1")
    stamp(1)
    HA = VD + 26
    e(f"v_add_u32 v{vT0}, s38, v{vLane}")
    e(f"v_lshrrev_b32 v{vT1}, 4, v{vT0}")
    e(f"v_lshlrev_b32 v{vT1}, 8, v{vT1}")
    e(f"v_and_b32 v{vT2}, 1, v{vT0}")
    e(f"v_lshl_add_u32 v{vT1}, v{vT2}, 7, v{vT1}")
    e(f"v_bfe_u32 v{vT2}, v{vT0}, 1, 3")
    e(f"v_lshl_add_u32 v{HA}, v{vT2}, 4, v{vT1}")
    e(f"s_mov_b32 s66, {HP}")
    e(f"s_mov_b32 s67, {HP+18432}")
    e(f"s_mov_b32 s68, {HP+2*18432}")
    e(f"s_movk_i32 s69, {PR_HPUB}")
    ldsspin("L_hp", vL4, L_PR, "s69", sleep=4)
    e("s_waitcnt vmcnt(0)")
    e("s_mov_b64 exec, 0x1f")
    H = 64
    e(f"v_lshlrev_b32 v{H+12}, 16, v{B1}")
    e(f"v_and_b32 v{H+13}, 0xffff0000, v{B1}")
    e(f"v_lshlrev_b32 v{H+14}, 16, v{B1+1}")
    e(f"v_and_b32 v{H+15}, 0xffff0000, v{B1+1}")
    mpoll("L_h", [116, 120, 124], 40, 40, lambda k, r: e(f"buffer_load_dwordx4 v[{r}:{r+3}], v{HA}, s[{sWS}:{sWS+3}], s{66+k} offen {LP}"), HD, base="0x1f", switch=[66, 67, 68])
    mask4(H, 116); mask4(H + 4, 120); mask4(H + 8, 124)
    pkadd(H, H, H + 4); pkadd(H + 8, H + 8, H + 12)
    stamp(3)
    pkadd(H, H, H + 8)
    c1 = -2.0 * math.sqrt(2.0 / math.pi) * math.log2(math.e)
    e(f"v_mov_b32 v{H+12}, {f32(c1)}")
    e(f"v_mov_b32 v{H+13}, {f32(c1 * 0.044715)}")
    for r in range(4): e(f"v_mul_f32 v{H+4+r}, v{H+r}, v{H+r}")
    for r in range(4): e(f"v_fma_f32 v{H+4+r}, v{H+4+r}, v{H+13}, v{H+12}")
    for r in range(4): e(f"v_mul_f32 v{H+4+r}, v{H+4+r}, v{H+r}")
    for r in range(4): e(f"v_exp_f32 v{H+4+r}, v{H+4+r}")
    for r in range(4): e(f"v_add_f32 v{H+4+r}, 1.0, v{H+4+r}")
    for r in range(4): e(f"v_rcp_f32 v{H+4+r}, v{H+4+r}")
    for r in range(4): e(f"v_mul_f32 v{H+r}, v{H+r}, v{H+4+r}")
    e(f"ds_write_b128 v{vL16}, v[{H}:{H+3}] offset:{L_H}")
    flagset(L_HF, vOne)
    e("s_branch L_tail")

    if stamps:
        lab("L_finb4")
        e("s_cmp_ge_u32 s2, 36")
        e("s_cbranch_scc1 L_fin")
        e("s_barrier")
    lab("L_fin")
    if stamps:
        e("s_mov_b64 exec, -1")
        e("s_waitcnt vmcnt(0)")
        stamp(9)
        e("s_waitcnt lgkmcnt(0)")
        e("s_sleep 100")
        for i in range(20): e(f"v_mov_b32 v{32+i}, s{80+i}")
        e(f"s_mul_i32 s66, s2, {NW}")
        e(f"s_add_u32 s66, s66, s{sW}")
        e("s_mul_i32 s66, s66, 80")
        e(f"s_add_u32 s66, s66, {STAMP}")
        e("s_mov_b64 exec, 1")
        for i in range(5):
            e(f"buffer_store_dwordx4 v[{32+4*i}:{35+4*i}], v{vZ}, s[{sWS}:{sWS+3}], s66 offen offset:{16*i}")
    lab("L_end")
    e("s_endpgm")
    lab("L_codeend")
    txt = header(256, NW * 64, LDS_BYTES).replace(".amdgcn_target", DOC + ".amdgcn_target", 1) + "\n".join(L) + "\n" + footer(168, 100)
    open(out, "w").write(txt)

if __name__ == "__main__":
    if len(sys.argv) > 1:
        for spec in sys.argv[1:]:
            name, kw = spec.split("=", 1)
            kw = eval("dict(%s)" % kw)
            gen(name + "s.s", stamps=True, **kw)
            gen(name + ".s", stamps=False, **kw)
    else:
        gen("k12.s", stamps=False)
        gen("k12s.s", stamps=True)
```
